```python
import torch

def _softmax(x, axis=-1):
    return torch.softmax(x, dim=axis)
def _gelu(x):
    return torch.nn.functional.gelu(x, approximate="tanh")
def _silu(x):
    return torch.nn.functional.silu(x)
def _sigmoid(x):
    return torch.sigmoid(x)
def _layernorm(x, axis=-1, eps=1e-5):
    m = x.mean(dim=axis, keepdim=True)
    v = x.var(dim=axis, keepdim=True, unbiased=False)
    return (x - m) / torch.sqrt(v + eps)
def _scatter_add(tgt, idx, src, axis=0):
    return tgt.clone().index_add_(axis, idx, src)
def _segment_sum(src, seg, n):
    out = torch.zeros((n,) + src.shape[1:], dtype=src.dtype)
    return out.index_add_(0, seg, src)
def _pad(x, pw):
    flat = tuple(v for pair in reversed(pw) for v in pair)
    return torch.nn.functional.pad(x, flat)

kernel_name = 'sequential_preLN__ssm_conv_s4__geglu_ffn__prompt'

def setup_inputs():

    _w = (lambda a: (lambda t: t.to(torch.bfloat16) if t.is_floating_point() else t)(torch.as_tensor(a)))
    def _A_setup():
        B, L, D, N = 1, 2048, 640, 192
        A_re = -(lambda _x: torch.exp(torch.as_tensor(_x)))((lambda *s: torch.randn(*s, dtype=torch.bfloat16) * 6.4)(D, N))
        A_im = torch.pi * (lambda *s: torch.randn(*s, dtype=torch.bfloat16) * 0.05)(D, N)
        B_re = (lambda *s: torch.randn(*s, dtype=torch.bfloat16) * 0.05)(D, N)
        B_im = (lambda *s: torch.randn(*s, dtype=torch.bfloat16) * 0.05)(D, N)
        C_re = (lambda *s: torch.randn(*s, dtype=torch.bfloat16) * 0.05)(D, N)
        C_im = (lambda *s: torch.randn(*s, dtype=torch.bfloat16) * 0.05)(D, N)
        log_dt = (lambda *s: torch.randn(*s, dtype=torch.bfloat16) * 0.05)(D) * 0.5 - 4.0
        Dskip = (lambda *s: torch.randn(*s, dtype=torch.bfloat16) * 0.05)(D)
        return {
            "u": _w((lambda *s: torch.randn(*s, dtype=torch.bfloat16) * 0.05)(B, L, D)),
            "A_re": _w(A_re),
            "A_im": _w(A_im),
            "B_re": _w(B_re),
            "B_im": _w(B_im),
            "C_re": _w(C_re),
            "C_im": _w(C_im),
            "log_dt": _w(log_dt),
            "Dskip": _w(Dskip),
        }
    _A_in = _A_setup()

    def _B_setup():
        B, S, D, F = 1, 2048, 640, 1536
        return {
            "x": _w((lambda *s: torch.randn(*s, dtype=torch.bfloat16) * 0.05)(B, S, D)),
            "w_gate": _w((lambda *s: torch.randn(*s, dtype=torch.bfloat16) * 0.05)(D, F)),
            "w_up": _w((lambda *s: torch.randn(*s, dtype=torch.bfloat16) * 0.05)(D, F)),
            "w_down": _w((lambda *s: torch.randn(*s, dtype=torch.bfloat16) * 0.05)(F, D)),
        }
    _B_in = _B_setup()

    return {
        "A_u": _A_in["u"],
        "A_A_re": _A_in["A_re"],
        "A_A_im": _A_in["A_im"],
        "A_B_re": _A_in["B_re"],
        "A_B_im": _A_in["B_im"],
        "A_C_re": _A_in["C_re"],
        "A_C_im": _A_in["C_im"],
        "A_log_dt": _A_in["log_dt"],
        "A_Dskip": _A_in["Dskip"],
        "B_x": _B_in["x"],
        "B_w_gate": _B_in["w_gate"],
        "B_w_up": _B_in["w_up"],
        "B_w_down": _B_in["w_down"],
    }

def reference(A_u, A_A_re, A_A_im, A_B_re, A_B_im, A_C_re, A_C_im, A_log_dt, A_Dskip, B_x, B_w_gate, B_w_up, B_w_down):
    def _A_ref(u, A_re, A_im, B_re, B_im, C_re, C_im, log_dt, Dskip):
        Bsz, L, D = u.shape
        dt = torch.exp(log_dt)[:, None]
        A = A_re + 1j * A_im
        Bc = B_re + 1j * B_im
        Cc = C_re + 1j * C_im
        logdA = dt * A
        dB = dt * Bc
        l = (lambda x, dt: x.to(dt))(torch.arange(L), A_re.dtype)
        P = torch.exp(logdA[:, :, None] * l[None, None, :])
        K = torch.einsum("dn,dnl,dn->dl", Cc, P, dB).real
        L2 = 2 * L
        Kp = _pad(K, ((0, 0), (0, L)))
        up = (lambda x, *d: x.permute(*d))(u, 0, 2, 1)
        up = _pad(up, ((0, 0), (0, 0), (0, L)))
        Kf = (lambda x, axes=(-2,-1): torch.fft.rfft2(x.float(), dim=axes))(Kp[:, None, :], axes=(-2, -1))
        Uf = (lambda x, axes=(-2,-1): torch.fft.rfft2(x.float(), dim=axes))(up[:, :, None, :], axes=(-2, -1))
        Yf = Uf * Kf[None, :, :, :]
        y = (lambda x, s, axes=(-2,-1): torch.fft.irfft2(x, s=s, dim=axes).to(torch.bfloat16))(Yf, (1, L2), axes=(-2, -1))[:, :, 0, :L]
        y = (lambda x, *d: x.permute(*d))(y, 0, 2, 1) + u * Dskip[None, None, :]
        return y

    def _B_ref(x, w_gate, w_up, w_down):
        return (_gelu(x @ w_gate) * (x @ w_up)) @ w_down

    x = A_u
    h = x + _A_ref(_layernorm(x, axis=-1), A_A_re, A_A_im, A_B_re, A_B_im, A_C_re, A_C_im, A_log_dt, A_Dskip)
    h2 = h + _B_ref(_layernorm(h, axis=-1), B_w_gate, B_w_up, B_w_down)
    return h2
```

```python
import re

REG_RE = re.compile(r'(?<![\w.])([vas])(?:\[(\d+):(\d+)\]|(\d+))(?![\w])')


def regs_of(text):
    out = []
    for m in REG_RE.finditer(text):
        k = m.group(1)
        if m.group(4) is not None:
            out.append((k, int(m.group(4))))
        else:
            out += [(k, i) for i in range(int(m.group(2)), int(m.group(3)) + 1)]
    if re.search(r'(?<![\w.])vcc(?![\w])', text):
        out += [('s', 'vcc')]
    if re.search(r'(?<![\w.])m0(?![\w])', text):
        out += [('s', 'm0')]
    if re.search(r'(?<![\w.])exec(_lo|_hi)?(?![\w])', text):
        out += [('s', 'exec')]
    return out


def split_ops(rest):
    ops, depth, cur = [], 0, ''
    for ch in rest:
        if ch == '[':
            depth += 1
        if ch == ']':
            depth -= 1
        if ch == ',' and depth == 0:
            ops.append(cur.strip())
            cur = ''
        else:
            cur += ch
    if cur.strip():
        ops.append(cur.strip())
    return ops


DUMMY = {('v', 254), ('v', 255)}
TRANS = ('v_exp_f32', 'v_log_f32', 'v_rcp_f32', 'v_rsq_f32', 'v_sqrt_f32', 'v_sin_f32', 'v_cos_f32')


class Ins:
    def __init__(self, text, tag=None):
        self.text = text.strip()
        self.tag = tag
        t = self.text.split(';')[0].strip()
        self.label = t.endswith(':')
        self.directive = t.startswith('.') and not self.label
        self.op = '' if (self.label or self.directive or not t) else t.split()[0]
        rest = t[len(self.op):] if self.op else ''
        ops = split_ops(rest)
        self.dst, self.src = [], []
        self.srcC, self.srcAB = [], []
        op = self.op
        self.kind = 'other'
        if not op:
            return
        R = [regs_of(o) for o in ops]
        flat = lambda L: [r for x in L for r in x]
        if op.startswith('v_mfma'):
            self.kind = 'mfma'
            self.passes = 8 if '32x32x16' in op else 4
            self.dst = R[0]
            self.srcAB = R[1] + R[2]
            self.srcC = R[3]
            self.src = self.srcAB + self.srcC
        elif op.startswith('v_'):
            self.kind = 'valu'
            base = op.replace('_e32', '').replace('_e64', '').replace('_dpp', '').replace('_sdwa', '')
            self.trans = base in TRANS
            self.dot = base.startswith('v_dot')
            self.dpp = ('row_' in t) or ('quad_perm' in t) or ('wave_' in t)
            self.perml = base.startswith('v_permlane')
            self.readlane = base.startswith('v_readlane') or base.startswith('v_readfirstlane')
            if self.perml or base == 'v_swap_b32':
                self.dst = R[0] + R[1]
                self.src = R[0] + R[1]
            elif '_co_' in base:
                self.dst = R[0] + R[1]
                self.src = flat(R[2:])
            else:
                self.dst = R[0]
                self.src = flat(R[1:])
                if base.startswith(('v_fmac', 'v_dot2c', 'v_pk_fmac', 'v_writelane')) or self.dpp:
                    self.src += R[0]
                if base.startswith('v_cmpx'):
                    self.dst = self.dst + [('s', 'exec')]
        elif op.startswith('ds_'):
            self.kind = 'ds'
            if op.startswith(('ds_read', 'ds_bpermute', 'ds_permute', 'ds_swizzle')):
                self.dst = R[0]
                self.src = flat(R[1:])
            else:
                self.src = flat(R)
        elif op.startswith(('buffer_', 'global_')):
            self.kind = 'vm'
            self.lds = bool(re.search(r'\blds\b', t)) or '_lds_' in op
            self.store = 'store' in op or 'atomic' in op
            self.wide = self.store and ('x3' in op or 'x4' in op)
            if 'load' in op and not self.lds:
                self.dst = [r for r in R[0] if r not in DUMMY]
                self.src = flat(R[1:])
            else:
                self.src = flat(R)
                if self.lds:
                    self.src.append(('s', 'm0'))
            if self.store:
                self.data = R[0] if op.startswith('buffer_') else R[1]
        elif op.startswith(('s_load', 's_buffer_load', 's_memtime', 's_memrealtime')):
            self.kind = 'smem'
            self.dst = R[0]
            self.src = flat(R[1:])
        elif op.startswith('s_'):
            self.kind = 'salu'
            if op.startswith(('s_cmp', 's_cbranch', 's_branch', 's_waitcnt', 's_nop', 's_barrier', 's_endpgm',
                              's_sleep', 's_setprio', 's_setpc', 's_bitcmp')):
                self.src = flat(R)
            else:
                self.dst = R[0] if R else []
                self.src = flat(R[1:])
                if 'saveexec' in op:
                    self.dst = self.dst + [('s', 'exec')]

    def states(self):
        if self.op == 's_nop':
            return int(self.text.split(';')[0].split()[1], 0) + 1
        return 1 if self.op else 0


def need_states(p, c):
    n = 0
    ov = lambda a, b: bool(set(a) & set(b))
    vec = lambda L: [r for r in L if r[0] in 'va']
    sc = lambda L: [r for r in L if r[0] == 's']
    if p.kind == 'valu':
        if c.kind == 'mfma' and ov(vec(p.dst), c.src):
            n = max(n, 3 if p.dot else 2)
        if c.kind == 'mfma' and ('s', 'exec') in p.dst:
            n = max(n, 4)
        if c.kind == 'valu':
            if p.trans and not c.trans and ov(p.dst, c.src):
                n = max(n, 1)
            if p.dot and ov(p.dst, c.src + c.dst) and p.op != c.op:
                n = max(n, 3)
            if p.dot and p.op == c.op and ov(p.dst, [r for r in c.src if r not in c.dst]):
                n = max(n, 3)
            if (c.dpp or c.perml) and ov(vec(p.dst), c.src):
                n = max(n, 2)
            if c.readlane and ov(vec(p.dst), c.src):
                n = max(n, 1)
            if ov(sc(p.dst), c.src):
                n = max(n, 4 if c.readlane else 2)
            if ('s', 'exec') in p.dst and (c.dpp or c.perml or c.readlane):
                n = max(n, 5)
            if 'op_sel' in p.text and not p.op.startswith('v_pk_') and ov(p.dst, c.src):
                n = max(n, 1)
        if c.kind in ('vm', 'ds') and p.dot and ov(p.dst, c.src):
            n = max(n, 3)
        if c.kind in ('vm', 'ds') and p.trans and ov(p.dst, c.src):
            n = max(n, 1)
        if c.kind == 'vm' and ov(sc(p.dst), c.src):
            n = max(n, 5)
        if c.kind in ('salu', 'smem') and ov(sc(p.dst), c.src):
            n = max(n, 1)
    if p.kind == 'mfma':
        big = p.passes == 8
        if c.kind == 'mfma':
            if ov(p.dst, c.srcAB):
                n = max(n, 12 if big else 8)
            if ov(p.dst, c.srcC) and not (p.dst == c.srcC and p.passes == c.passes):
                n = max(n, 10 if big else 6)
            if ov(p.dst, c.dst) and not (p.dst == c.srcC and p.passes == c.passes):
                n = max(n, 10 if big else 6)
        elif c.kind in ('valu', 'vm', 'ds'):
            if ov(p.dst, c.src + c.dst):
                n = max(n, 12 if big else 8)
            if c.kind == 'valu' and ov(p.srcC, c.dst):
                n = max(n, 7 if big else 3)
    if p.kind == 'vm' and p.wide and ov(p.data, c.dst):
        n = max(n, 2)
    if p.kind == 'salu' and ('s', 'm0') in p.dst and ('s', 'm0') in c.src and c.kind in ('vm', 'ds'):
        n = max(n, 1)
    return n


class Prog:
    def __init__(self):
        self.items = []

    def __call__(self, text, tag=None):
        for line in text.strip('\n').split('\n'):
            if line.strip():
                self.items.append(Ins(line, tag))
        return self

    def add(self, items):
        self.items += items

    def wait_vm(self, tag):
        i = Ins('; wait_vm')
        i.kind = 'wait_vm'
        i.tag = tag
        self.items.append(i)

    def flush(self):
        i = Ins('; flush')
        i.kind = 'flush'
        self.items.append(i)


def interleave(main, fill, per_gap, start=0):
    out, j = [], 0
    for g, m in enumerate(main):
        out.append(m)
        if g >= start:
            k = per_gap(g) if callable(per_gap) else per_gap
            out += fill[j:j + k]
            j += k
    out += fill[j:]
    return out


def finalize(items):
    out = []
    vmq, lgq = [], []
    smem_pending = []

    def emit_wait(vm=None, lg=None):
        parts = []
        if vm is not None:
            parts.append(f'vmcnt({min(vm, 63)})')
        if lg is not None:
            parts.append(f'lgkmcnt({min(lg, 15)})')
        out.append(Ins('s_waitcnt ' + ' '.join(parts)))

    for c in items:
        if c.kind == 'flush':
            vmq.clear(); lgq.clear(); smem_pending.clear()
            continue
        if c.kind == 'wait_vm':
            idx = [i for i, p in enumerate(vmq) if p.tag == c.tag]
            if idx:
                n = len(vmq) - 1 - idx[-1]
                emit_wait(vm=n)
                del vmq[:len(vmq) - min(n, 63)]
            continue
        if c.op == 's_waitcnt':
            m = re.search(r'vmcnt\((\d+)\)', c.text)
            if m:
                n = int(m.group(1))
                del vmq[:max(0, len(vmq) - n)]
            m = re.search(r'lgkmcnt\((\d+)\)', c.text)
            if m:
                n = int(m.group(1))
                if n == 0:
                    smem_pending.clear()
                    lgq.clear()
                elif not smem_pending:
                    del lgq[:max(0, len(lgq) - n)]
            out.append(c)
            continue
        touched = set(c.src) | set(c.dst)
        vm = lg = None
        idx = [i for i, p in enumerate(vmq) if touched & set(p.dst)]
        if idx:
            vm = len(vmq) - 1 - idx[-1]
        same_q = c.kind == 'ds'
        idx = [i for i, p in enumerate(lgq) if (set(c.src) if same_q else touched) & set(p.dst)]
        if idx:
            lg = 0 if smem_pending else len(lgq) - 1 - idx[-1]
        if any(touched & set(p.dst) for p in smem_pending):
            lg = 0
        if vm is not None or lg is not None:
            emit_wait(vm, lg)
            if vm is not None:
                del vmq[:len(vmq) - min(vm, 63)]
            if lg is not None:
                if lg == 0:
                    smem_pending.clear()
                del lgq[:len(lgq) - min(lg, 15)]
        if c.kind == 'vm':
            vmq.append(c)
        elif c.kind == 'ds':
            lgq.append(c)
        elif c.kind == 'smem':
            smem_pending.append(c)
        out.append(c)

    res = []
    for c in out:
        if c.op:
            need, dist = 0, 0
            for p in reversed(res):
                if dist >= 20:
                    break
                if p.op:
                    need = max(need, need_states(p, c) - dist)
                    dist += p.states()
            if need > 0:
                res.append(Ins(f's_nop {need - 1}'))
        res.append(c)
    return res


def render(items):
    return '\n'.join(('' if (i.label or i.directive) else '    ') + i.text for i in items) + '\n'


def kernel(name, prog, vgpr=512, sgpr=102, accum=256):
    body = render(finalize(prog.items))
    return f""".text
.globl {name}
.p2align 8
.type {name},@function
{name}:
{body}.section .rodata,"a"
.p2align 6
.amdhsa_kernel {name}
  .amdhsa_next_free_vgpr {vgpr}
  .amdhsa_next_free_sgpr {sgpr}
  .amdhsa_accum_offset {accum}
  .amdhsa_group_segment_fixed_size 0
  .amdhsa_kernarg_size 128
  .amdhsa_user_sgpr_count 2
  .amdhsa_user_sgpr_kernarg_segment_ptr 1
  .amdhsa_system_sgpr_workgroup_id_x 1
.end_amdhsa_kernel
"""
```

```python
from asmlib import *
import struct

WS_ST1, WS_ST2, WS_CS, WS_FLAG = 0, 0x4000, 0x8000, 0x10000
WS_W1P, WS_W2P, WS_H, WS_G, WS_SIZE = 0x100000, 0x4C0000, 0x6A0000, 0x920000, 0xF20000
OOB = 0x7ffffff0

P_X, P_ARE, P_AIM, P_BRE, P_BIM, P_CRE, P_CIM, P_LDT = [f's[{16+2*i}:{17+2*i}]' for i in range(8)]
P_DSK = 's[32:33]'
SRD_WS, SRD_OUT, SRD_W, SRD_DBG = 's[48:51]', 's[52:55]', 's[56:59]', 's[60:63]'
S_WAVE = 's3'
LANE = 'v0'


def f32(x):
    return hex(struct.unpack('<I', struct.pack('<f', x))[0])


class Alloc:
    def __init__(self, start, kind='v', limit=256):
        self.n, self.kind, self.limit = start, kind, limit

    def __call__(self, n=1, align=None):
        align = align or (2 if n > 1 else 1)
        self.n = (self.n + align - 1) // align * align
        r = self.n
        self.n += n
        assert self.n <= self.limit, 'out of registers'
        return r


def v(i, n=1):
    return f'v{i}' if n == 1 else f'v[{i}:{i+n-1}]'


def a(i, n=1):
    return f'a{i}' if n == 1 else f'a[{i}:{i+n-1}]'


def prologue(p, nwg, exit_label):
    p(f"""
s_cmp_ge_u32 s2, {nwg}
s_cbranch_scc1 {exit_label}
s_load_dwordx16 s[16:31], s[0:1], 0
s_load_dwordx16 s[32:47], s[0:1], 64
v_lshrrev_b32 v1, 6, v0
v_and_b32 v0, 63, v0
v_readfirstlane_b32 {S_WAVE}, v1
s_mov_b32 s50, {WS_SIZE}
s_mov_b32 s51, 0x20000
s_mov_b32 s54, 2621440
s_mov_b32 s55, 0x20000
s_mov_b32 s58, 1966080
s_mov_b32 s59, 0x20000
s_mov_b32 s62, 256
s_mov_b32 s63, 0x20000
s_waitcnt lgkmcnt(0)
s_mov_b32 s48, s46
s_mov_b32 s49, s47
s_mov_b32 s52, s42
s_mov_b32 s53, s43
s_mov_b32 s60, s44
s_mov_b32 s61, s45
""")


def ln_finalize(p, s1, s2, t, mb, sd):
    p(f"""
v_mul_f32 {v(s1)}, {f32(1/640)}, {v(s1)}
v_mul_f32 {v(s2)}, {f32(1/640)}, {v(s2)}
v_fma_f32 {v(s2)}, -{v(s1)}, {v(s1)}, {v(s2)}
v_max_f32 {v(s2)}, 0, {v(s2)}
v_cvt_pk_bf16_f32 {v(t)}, {v(s1)}, {v(s2)}
v_lshlrev_b32 {v(mb)}, 16, {v(t)}
v_and_b32 {v(t)}, 0xffff0000, {v(t)}
v_add_f32 {v(t)}, {f32(1e-5)}, {v(t)}
v_cvt_pk_bf16_f32 {v(t)}, {v(t)}, {v(t)}
v_and_b32 {v(t)}, 0xffff0000, {v(t)}
v_sqrt_f32 {v(t)}, {v(t)}
v_cvt_pk_bf16_f32 {v(t)}, {v(t)}, {v(t)}
v_and_b32 {v(sd)}, 0xffff0000, {v(t)}
""")


def stats1_loads(p, hi):
    p(f"""
s_lshr_b32 s4, {hi}, 4
s_lshr_b32 s5, {hi}, 2
s_and_b32 s5, s5, 3
s_and_b32 s6, {hi}, 3
s_lshl_b32 s6, s6, 2
s_add_u32 s6, s6, {S_WAVE}
s_lshl_b32 s6, s6, 7
s_lshl_b32 s5, s5, 3
s_lshl_b32 s4, s4, 1
s_add_u32 s6, s6, s5
s_add_u32 s6, s6, s4
v_lshrrev_b32 v2, 4, {LANE}
v_lshlrev_b32 v2, 5, v2
v_bfe_u32 v3, {LANE}, 3, 1
v_add3_u32 v2, v2, v3, s6
v_mul_u32_u24 v2, 1280, v2
v_and_b32 v3, 7, {LANE}
v_lshl_add_u32 v2, v3, 4, v2
""")
    for i in range(10):
        p(f"global_load_dwordx4 {v(8+4*i, 4)}, v2, {P_X} offset:{i*128}")


def stats1_compute(p, hi, stflag):
    p("s_mov_b32 s4, 0x3f803f80")
    for r in range(4, 8):
        p(f"v_mov_b32 {v(r)}, 0")
    for i in range(40):
        p(f"v_dot2c_f32_bf16 {v(4+(i&1))}, s4, {v(8+i)}")
        p(f"v_dot2c_f32_bf16 {v(6+(i&1))}, {v(8+i)}, {v(8+i)}")
    p("v_add_f32 v4, v4, v5\nv_add_f32 v6, v6, v7")
    for d in ('quad_perm:[1,0,3,2]', 'quad_perm:[2,3,0,1]', 'row_half_mirror'):
        p(f"v_add_f32_dpp v4, v4, v4 {d} row_mask:0xf bank_mask:0xf")
        p(f"v_add_f32_dpp v6, v6, v6 {d} row_mask:0xf bank_mask:0xf")
    ln_finalize(p, 4, 6, 5, 7, 8)
    p(f"""
v_rcp_f32 v10, v8
s_lshl_b32 s4, {hi}, 8
s_lshl_b32 s5, {S_WAVE}, 6
s_add_u32 s4, s4, s5
v_or_b32 v10, 1, v10
v_mul_f32 v11, -v7, v10
v_and_b32 v3, 7, {LANE}
v_add_u32 v2, s4, {LANE}
v_cmp_eq_u32 vcc, 0, v3
v_mov_b32 v9, {OOB}
v_cndmask_b32 v2, v9, v2, vcc
buffer_store_dwordx2 v[10:11], v2, {SRD_WS}, 0 offen {stflag}
""", tag='st1')


PW1_LDS, PW2_LDS, PCS_LDS = 0, 40960, 65536


def pack1_loads(p, hi):
    p(f"""
s_bitcmp1_b32 {hi}, 0
s_cselect_b32 s56, s38, s36
s_cselect_b32 s57, s39, s37
s_bfe_u32 s4, {hi}, 0x10001
s_mul_i32 s4, s4, 320
s_mul_i32 s5, {S_WAVE}, 80
s_add_u32 s4, s4, s5
s_mul_i32 s4, s4, 3072
s_lshr_b32 s5, {hi}, 2
s_lshl_b32 s5, s5, 7
s_add_u32 s4, s4, s5
v_lshrrev_b32 v50, 3, {LANE}
v_mul_u32_u24 v50, 3072, v50
v_and_b32 v51, 7, {LANE}
v_lshl_add_u32 v50, v51, 4, v50
s_mul_i32 s5, {S_WAVE}, 10240
s_add_u32 s5, s5, {PW1_LDS}
""")
    for i in range(10):
        p(f"s_mov_b32 m0, s5\ns_add_u32 s5, s5, 1024")
        p(f"buffer_load_dwordx4 v50, {SRD_W}, s4 offen lds", tag='pk1')
        p(f"s_add_u32 s4, s4, {8*3072}")


def pack1_compute(p, hi, stflag):
    p(f"""
s_and_b32 s4, {S_WAVE}, 1
s_lshr_b32 s5, {S_WAVE}, 1
s_bfe_u32 s6, {hi}, 0x10001
s_and_b32 s7, {hi}, 1
s_lshr_b32 s8, {hi}, 2
v_bfe_u32 v2, {LANE}, 4, 1
s_lshl_b32 s9, s4, 1
v_add_u32 v2, s9, v2
v_lshrrev_b32 v3, 5, {LANE}
v_bfe_u32 v4, {LANE}, 2, 2
v_lshl_add_u32 v4, v3, 2, v4
v_lshlrev_b32 v4, 7, v4
v_lshl_add_u32 v4, v2, 5, v4
v_and_b32 v5, 3, {LANE}
v_lshl_add_u32 v4, v5, 3, v4
s_mul_i32 s9, s5, {10*16*128}
s_add_u32 s9, s9, {PW1_LDS}
v_add_u32 v4, s9, v4
s_lshl_b32 s9, s8, 2
v_add_u32 v5, s9, v2
v_mul_u32_u24 v6, 43, v5
v_lshrrev_b32 v6, 8, v6
v_mul_u32_u24 v7, 6, v6
v_sub_u32 v7, v5, v7
v_cmp_lt_u32 vcc, 2, v7
v_lshlrev_b32 v6, 2, v6
s_lshl_b32 s9, s6, 1
v_add_u32 v6, s9, v6
v_mul_u32_u24 v6, 60, v6
v_add_u32 v6, v6, v7
v_cndmask_b32 v7, 0, 57, vcc
s_mul_i32 s9, s5, 30
v_add3_u32 v6, v6, v7, s9
v_lshlrev_b32 v6, 10, v6
v_and_b32 v7, 15, {LANE}
s_lshl_b32 s9, s6, 3
v_xor_b32 v8, s9, v7
v_lshl_add_u32 v8, v3, 5, v8
s_lshl_b32 s9, s7, 4
v_add_u32 v8, s9, v8
v_lshl_add_u32 v6, v8, 4, v6
v_add_u32 v6, {WS_W1P}, v6
v_mov_b32 v8, 0
v_mov_b32 v9, 0
s_mov_b32 s10, 0x3f803f80
""")
    p.wait_vm('pk1')
    p("s_barrier")
    for i in range(10):
        p(f"ds_read_b64_tr_b16 {v(12+4*i, 2)}, v4 offset:{i*2048}")
        p(f"ds_read_b64_tr_b16 {v(14+4*i, 2)}, v4 offset:{i*2048+1024}")
    p("s_mov_b32 s9, 0")
    for i in range(10):
        p(f"buffer_store_dwordx4 {v(12+4*i, 4)}, v6, {SRD_WS}, s9 offen {stflag}", tag='w1p')
        p("s_add_u32 s9, s9, 3072")
        for k in range(4):
            p(f"v_dot2c_f32_bf16 {v(8+(k&1))}, s10, {v(12+4*i+k)}")
    p(f"""
v_add_f32 v8, v8, v9
v_lshl_add_u32 v10, v2, 4, v7
v_lshlrev_b32 v10, 2, v10
s_lshl_b32 s9, s5, 1
s_add_u32 s9, s9, {PCS_LDS//256}
v_add_u32 v11, s9, v3
v_lshl_add_u32 v11, v11, 8, v10
ds_write_b32 v11, v8
v_lshlrev_b32 v10, 2, {LANE}
v_add_u32 v11, {PCS_LDS}, v10
s_waitcnt lgkmcnt(0)
s_barrier
ds_read2st64_b32 v[8:9], v11 offset0:0 offset1:1
ds_read2st64_b32 v[4:5], v11 offset0:2 offset1:3
s_lshl_b32 s9, s6, 1
s_add_u32 s9, s9, s7
s_mul_i32 s9, s9, 6144
s_lshl_b32 s11, s8, 8
s_add_u32 s9, s9, s11
s_add_u32 s9, s9, {WS_CS}
v_add_f32 v8, v8, v9
v_add_f32 v4, v4, v5
v_add_f32 v8, v8, v4
""")
    p(f"buffer_store_dword v8, v10, {SRD_WS}, s9 offen {stflag}", tag='w1p')


def pack2_loads(p, hi):
    p(f"""
s_mov_b32 s56, s40
s_mov_b32 s57, s41
s_mul_i32 s12, {hi}, 205
s_lshr_b32 s12, s12, 10
s_mul_i32 s13, s12, 5
s_sub_u32 s13, {hi}, s13
s_mul_i32 s4, s12, 96
s_mul_i32 s5, {S_WAVE}, 24
s_add_u32 s4, s4, s5
s_mul_i32 s4, s4, 1280
s_lshl_b32 s5, s13, 8
s_add_u32 s4, s4, s5
v_lshrrev_b32 v52, 4, {LANE}
v_mul_u32_u24 v52, 1280, v52
v_and_b32 v53, 15, {LANE}
v_lshl_add_u32 v52, v53, 4, v52
s_mul_i32 s5, {S_WAVE}, 6144
s_add_u32 s5, s5, {PW2_LDS}
""")
    for i in range(6):
        p(f"s_mov_b32 m0, s5\ns_add_u32 s5, s5, 1024")
        p(f"buffer_load_dwordx4 v52, {SRD_W}, s4 offen lds", tag='pk2')
        p(f"s_add_u32 s4, s4, {4*1280}")


def g_granule_rows(g12):
    w, ty = divmod(g12, 3)
    nh, kh = w & 1, w >> 1
    r0 = 48*nh + 8*kh + (4*ty if ty < 2 else 32)
    return r0, r0 + (16 if ty < 2 else 4)


def pack2_compute(p, hi, stflag):
    p(f"""
v_lshrrev_b32 v2, 4, {LANE}
v_lshlrev_b32 v2, 3, v2
v_bfe_u32 v3, {LANE}, 2, 2
v_lshlrev_b32 v3, 8, v3
v_and_b32 v4, 3, {LANE}
v_lshl_add_u32 v3, v4, 3, v3
s_lshl_b32 s4, {S_WAVE}, 6
s_add_u32 s4, s4, {PW2_LDS}
v_add_u32 v3, s4, v3
v_lshlrev_b32 v10, 4, {LANE}
""")
    for s3 in range(3):
        for k in range(2):
            c = sum(g_granule_rows(4*s3+g)[k] << (8*g) for g in range(4))
            r = 4 + 2*s3 + k
            p(f"s_mov_b32 s4, {hex(c)}\nv_bfe_u32 {v(r)}, s4, v2, 8\nv_lshl_add_u32 {v(r)}, {v(r)}, 8, v3")
    p.wait_vm('pk2')
    p("s_barrier")
    for e in range(2):
        for s3 in range(3):
            r = 12 + 4*(3*e+s3)
            p(f"ds_read_b64_tr_b16 {v(r, 2)}, {v(4+2*s3)} offset:{e*32}")
            p(f"ds_read_b64_tr_b16 {v(r+2, 2)}, {v(5+2*s3)} offset:{e*32}")
    for e in range(2):
        p(f"""
s_lshl_b32 s4, s13, 3
s_lshl_b32 s5, {S_WAVE}, 1
s_add_u32 s4, s4, s5
s_add_u32 s4, s4, {e}
s_mul_i32 s5, s4, 205
s_lshr_b32 s5, s5, 10
s_mul_i32 s6, s5, 5
s_sub_u32 s4, s4, s6
s_lshl_b32 s5, s5, 2
s_lshr_b32 s6, s12, 2
s_add_u32 s5, s5, s6
s_mul_i32 s5, s5, 60
s_and_b32 s6, s12, 3
s_mul_i32 s6, s6, 15
s_add_u32 s5, s5, s6
s_add_u32 s5, s5, s4
s_lshl_b32 s5, s5, 10
s_add_u32 s5, s5, {WS_W2P}
""")
        for s3 in range(3):
            p(f"buffer_store_dwordx4 {v(12+4*(3*e+s3), 4)}, v10, {SRD_WS}, s5 offen {stflag}", tag='w2p')
            p("s_add_u32 s5, s5, 5120")


KC_LDS, KC_CH, KC_COPY = 0, 16640, 4160
UC_LDS, UC_CH, UC_COPY, UC_PLANE = 66560, 10240, 5120, 1280
XC_LDS, XC_CH = 107520, 4096
TB_LDS, TB_W = 123904, 3072
CONV_LDS_END = TB_LDS + 4 * TB_W
STG_ROW = 800
LOG2E = 1.4426950408889634
INV2PI = 0.15915494309189535


class ConvRegs:
    def __init__(self):
        A = Alloc(2)
        self.t = A(6)
        self.x = A(16, 4)
        self.st = A(16, 4)
        self.dfrag = A(4, 4)
        self.aA = A()
        self.aB = A()
        self.aXr = A()
        self.aUw = A()
        self.aFix = A()
        self.aHw = A()
        self.aHr = A()
        self.aHg = A()
        self.aSt = A()
        self.base = A.n


def cmul(p, dsts, xs, es, tmps):
    for d, x, e, t in zip(dsts, xs, es, tmps):
        p(f"v_pk_mul_f32 {v(t, 2)}, {v(x, 2)}, {v(e, 2)} op_sel:[0,0] op_sel_hi:[0,1]")
    for d, x, e, t in zip(dsts, xs, es, tmps):
        p(f"v_pk_fma_f32 {v(d, 2)}, {v(x, 2)}, {v(e, 2)}, {v(t, 2)} op_sel:[1,1,0] op_sel_hi:[1,0,1] neg_lo:[0,1,0]")


def conv_loads(p, R, sq):
    A = Alloc(R.base)
    R.pd = A(6)
    R.ps = A(6)
    R.ldt = A()
    R.dsk = A()
    R.kbase = A.n
    t = R.t
    p(f"""
s_lshl_b32 s4, {sq}, 2
s_add_u32 s4, s4, {S_WAVE}
s_mul_i32 s5, s4, 384
v_lshl_add_u32 {v(t)}, {LANE}, 2, s5
v_lshl_add_u32 {v(t+1)}, {LANE}, 1, s5
s_lshl_b32 s4, s4, 1
v_mov_b32 {v(t+2)}, s4
global_load_ushort {v(R.ldt)}, {v(t+2)}, {P_LDT}
""")
    for i, P in enumerate((P_ARE, P_AIM, P_BRE, P_BIM, P_CRE, P_CIM)):
        p(f"global_load_dword {v(R.pd+i)}, {v(t)}, {P}")
        p(f"global_load_ushort {v(R.ps+i)}, {v(t+1)}, {P} offset:256")
    p(f"""
global_load_ushort {v(R.dsk)}, {v(t+2)}, {P_DSK}
s_mul_i32 s5, {S_WAVE}, {8*1280}
s_lshl_b32 s6, {sq}, 3
s_add_u32 s5, s5, s6
s_add_u32 s5, s5, {2*1280}
v_mul_u32_u24 {v(t+3)}, {32*1280}, {LANE}
v_add_u32 {v(t+3)}, s5, {v(t+3)}
v_add_u32 {v(t+4)}, {4*1280}, {v(t+3)}
""")
    for i in range(8):
        p(f"global_load_dwordx2 {v(R.x+2*i, 2)}, {v(t+3+i//4)}, {P_X} offset:{(i%4-2)*1280}")


def conv_addresses(p, R, sq):
    t = R.t
    p(f"""
v_and_b32 {v(t)}, 15, {LANE}
v_lshrrev_b32 {v(t+1)}, 4, {LANE}
v_lshrrev_b32 {v(t+2)}, 2, {v(t)}
v_and_b32 {v(t+3)}, 3, {LANE}
s_mul_i32 s4, {S_WAVE}, {KC_CH}
v_sub_u32 {v(t+4)}, 3, {v(t+3)}
v_mul_u32_u24 {v(t+4)}, {KC_COPY}, {v(t+4)}
v_sub_u32 {v(t+5)}, {v(t+1)}, {v(t+2)}
v_add_u32 {v(t+5)}, 3, {v(t+5)}
v_lshl_add_u32 {v(t+4)}, {v(t+5)}, 4, {v(t+4)}
v_add_u32 {v(R.aA)}, s4, {v(t+4)}
s_mul_i32 s5, {S_WAVE}, {UC_CH}
s_add_u32 s5, s5, {UC_LDS}
v_mul_u32_u24 {v(t+4)}, {UC_PLANE}, {v(t+1)}
v_lshl_add_u32 {v(t+4)}, {v(t)}, 4, {v(t+4)}
v_add_u32 {v(R.aB)}, s5, {v(t+4)}
s_lshl_b32 s5, {S_WAVE}, 12
s_add_u32 s5, s5, {XC_LDS}
v_lshlrev_b32 {v(t+4)}, 10, {v(t+1)}
v_lshl_add_u32 {v(t+4)}, {v(t)}, 4, {v(t+4)}
v_add_u32 {v(R.aXr)}, s5, {v(t+4)}
s_mul_i32 s5, {S_WAVE}, {UC_PLANE}
s_add_u32 s5, s5, {UC_LDS + 256}
v_lshl_add_u32 {v(R.aUw)}, {LANE}, 4, s5
s_add_u32 s6, s5, {UC_PLANE}
s_cmp_eq_u32 {S_WAVE}, 3
s_cselect_b32 s6, {UC_LDS + 256 + 16}, s6
v_lshl_add_u32 {v(R.aFix)}, {LANE}, 4, s6
s_lshl_b32 s5, {S_WAVE}, 6
s_add_u32 s5, s5, s4
v_mul_u32_u24 {v(t+4)}, 528, {v(t+1)}
v_lshl_add_u32 {v(t+4)}, {v(t)}, 3, {v(t+4)}
v_add_u32 {v(R.aHw)}, s5, {v(t+4)}
v_mul_u32_u24 {v(t+4)}, {KC_CH + 64}, {v(t+2)}
v_mul_u32_u24 {v(t+5)}, 528, {v(t+3)}
v_add_u32 {v(t+4)}, {v(t+4)}, {v(t+5)}
v_lshl_add_u32 {v(t+4)}, {v(t+1)}, 3, {v(t+4)}
s_lshl_b32 s5, {S_WAVE}, 7
v_add_u32 {v(R.aHr)}, s5, {v(t+4)}
s_mul_i32 s5, {S_WAVE}, {16*40960}
s_lshl_b32 s6, {sq}, 8
s_add_u32 s5, s5, s6
s_add_u32 s5, s5, {WS_H}
v_mul_u32_u24 {v(t+4)}, 40960, {v(t+1)}
v_lshl_add_u32 {v(t+4)}, {v(t)}, 4, {v(t+4)}
v_add_u32 {v(R.aHg)}, s5, {v(t+4)}
s_lshl_b32 s5, {S_WAVE}, 10
s_add_u32 s5, s5, {WS_ST1}
v_lshl_add_u32 {v(R.aSt)}, {LANE}, 4, s5
""")
    z = R.st
    for k in range(4):
        p(f"v_mov_b32 {v(z+k)}, 0")
    p(f"ds_write_b128 {v(R.aB)}, {v(z, 4)}\nds_write_b128 {v(R.aB)}, {v(z, 4)} offset:{UC_COPY}")


def kgen(p, R):
    A = Alloc(R.kbase)
    aW64, aW32, aFr, aT0, aT1, aT2, aG3, aK = [A() for _ in range(8)]
    aQ = A()
    pk = [A(4, 2), A(4, 2)]
    scratch = A(0, 4)
    E1, E16, E256, Q0, Q1, TM = [[A(2) for _ in range(3)] for _ in range(6)]
    P = {k: [A(2) for _ in range(3)] for k in range(2, 16, 2)}
    acc = A(12, 4)
    fB, fA = 0, 48
    t = R.t
    p(f"""
s_mul_i32 s4, {S_WAVE}, {KC_CH}
v_lshl_add_u32 {v(aW64)}, {LANE}, 3, s4
v_lshl_add_u32 {v(aK)}, {LANE}, 4, s4
s_add_u32 s5, s4, 512
v_lshl_add_u32 {v(aW32)}, {LANE}, 2, s5
v_and_b32 {v(t)}, 15, {LANE}
v_lshrrev_b32 {v(t+1)}, 4, {LANE}
v_mul_u32_u24 {v(t+2)}, {STG_ROW}, {v(t)}
v_lshl_add_u32 {v(t+2)}, {v(t+1)}, 4, {v(t+2)}
v_add_u32 {v(aFr)}, s4, {v(t+2)}
s_mul_i32 s5, {S_WAVE}, {TB_W}
s_add_u32 s5, s5, {TB_LDS}
v_lshlrev_b32 {v(t+2)}, 6, {v(t)}
v_lshl_add_u32 {v(t+2)}, {v(t+1)}, 4, {v(t+2)}
v_add_u32 {v(aT0)}, s5, {v(t+2)}
v_lshlrev_b32 {v(t+2)}, 5, {v(t)}
v_lshl_add_u32 {v(t+2)}, {v(t+1)}, 4, {v(t+2)}
v_lshlrev_b32 {v(t+3)}, 8, {v(t+1)}
v_lshl_add_u32 {v(t+4)}, {v(t)}, 4, {v(t+3)}
v_cmp_gt_u32 vcc, 32, {LANE}
v_cndmask_b32 {v(t+2)}, {v(t+4)}, {v(t+2)}, vcc
v_add_u32 {v(aT1)}, s5, {v(t+2)}
v_lshl_add_u32 {v(t+3)}, {v(t)}, 3, {v(t+3)}
v_add_u32 {v(aT2)}, s5, {v(t+3)}
v_sub_u32 {v(t+2)}, 63, {LANE}
v_lshl_add_u32 {v(aQ)}, {v(t+2)}, 2, s5
v_lshlrev_b32 {v(t+3)}, 5, {v(t+2)}
v_lshlrev_b32 {v(t+4)}, 4, {v(t+2)}
v_add_u32 {v(t+4)}, 512, {v(t+4)}
v_cndmask_b32 {v(t+3)}, {v(t+3)}, {v(t+4)}, vcc
v_add_u32 {v(aG3)}, s5, {v(t+3)}
""")
    dt = R.ldt
    p(f"""
v_lshlrev_b32 {v(dt)}, 16, {v(dt)}
v_mul_f32 {v(dt)}, {f32(LOG2E)}, {v(dt)}
v_exp_f32 {v(dt)}, {v(dt)}
v_cvt_pk_bf16_f32 {v(dt)}, {v(dt)}, {v(dt)}
v_and_b32 {v(dt)}, 0xffff0000, {v(dt)}
""")

    def unpack(dst3, i):
        p(f"v_lshlrev_b32 {v(dst3[0])}, 16, {v(R.pd+i)}")
        p(f"v_and_b32 {v(dst3[1])}, 0xffff0000, {v(R.pd+i)}")
        p(f"v_lshlrev_b32 {v(dst3[2])}, 16, {v(R.ps+i)}")
    Z = P[2]
    unpack(Z, 0)
    unpack([r+1 for r in Z], 1)
    for r in Z:
        p(f"v_mul_f32 {v(r)}, {v(dt)}, {v(r)}\nv_mul_f32 {v(r+1)}, {v(dt)}, {v(r+1)}")
    for r in Z:
        p(f"v_mul_f32 {v(r)}, {f32(LOG2E)}, {v(r)}\nv_mul_f32 {v(r+1)}, {f32(INV2PI)}, {v(r+1)}")
    for E, l in ((E16, 16.0), (E1, 1.0), (E256, 256.0)):
        M = P[4]
        for n in range(3):
            if l == 1.0:
                p(f"v_exp_f32 {v(M[n])}, {v(Z[n])}\nv_fract_f32 {v(M[n]+1)}, {v(Z[n]+1)}")
            else:
                p(f"v_mul_f32 {v(M[n])}, {f32(l)}, {v(Z[n])}\nv_mul_f32 {v(M[n]+1)}, {f32(l)}, {v(Z[n]+1)}")
        if l != 1.0:
            for n in range(3):
                p(f"v_exp_f32 {v(M[n])}, {v(M[n])}\nv_fract_f32 {v(M[n]+1)}, {v(M[n]+1)}")
        for n in range(3):
            p(f"v_cos_f32 {v(E[n])}, {v(M[n]+1)}\nv_sin_f32 {v(E[n]+1)}, {v(M[n]+1)}")
        for n in range(3):
            p(f"v_pk_mul_f32 {v(E[n], 2)}, {v(E[n], 2)}, {v(M[n], 2)} op_sel:[0,0] op_sel_hi:[1,0]")
    Bc, Cc = P[6], P[8]
    unpack(Bc, 2)
    unpack([r+1 for r in Bc], 3)
    unpack(Cc, 4)
    unpack([r+1 for r in Cc], 5)
    for r in Bc:
        p(f"v_mul_f32 {v(r)}, {v(dt)}, {v(r)}\nv_mul_f32 {v(r+1)}, {v(dt)}, {v(r+1)}")
    cmul(p, Q0, Cc, Bc, TM)

    cnt = [0]

    def put_row(row, src, neg=False):
        k = pk[cnt[0] & 1]
        cnt[0] += 1
        for n in range(3):
            p(f"v_cvt_pk_bf16_f32 {v(k+n)}, {v(src[n])}, {'-' if neg else ''}{v(src[n]+1)}")
        p(f"ds_write_b64 {v(aW64)}, {v(k, 2)} offset:{row*STG_ROW}")
        p(f"ds_write_b32 {v(aW32)}, {v(k+2)} offset:{row*STG_ROW}")

    def read_frags(dst):
        for s in range(12):
            p(f"ds_read_b128 {a(dst+4*s, 4)}, {v(aFr)} offset:{s*64}")

    def mfmas(T):
        for s in range(12):
            c = '0' if s == 0 else v(acc+4*T, 4)
            p(f"v_mfma_f32_16x16x32_bf16 {v(acc+4*T, 4)}, {a(fA+4*s, 4)}, {a(fB+4*s, 4)}, {c}")

    cur, nxt = Q0, Q1
    put_row(0, cur, True)
    for c in range(1, 16):
        cmul(p, nxt, cur, E16, TM)
        put_row(c, nxt, True)
        cur, nxt = nxt, cur
    read_frags(fB)
    k = pk[cnt[0] & 1]
    cnt[0] += 1
    p(f"v_mov_b32 {v(k)}, 0x3f80\nv_mov_b32 {v(k+1)}, 0x3f80")
    p(f"ds_write_b64 {v(aW64)}, {v(k, 2)}\nds_write_b32 {v(aW32)}, {v(k)}")
    put_row(1, E1)
    cur = E1
    for c in range(2, 16):
        d = P[c] if c % 2 == 0 else Q0
        cmul(p, d, cur, E1, TM)
        put_row(c, d)
        cur = d
    read_frags(fA)
    G2, G3 = E1, E16
    cmul(p, G2, E256, E256, TM)
    cmul(p, G3, G2, E256, TM)
    put_row(0, E256)
    for e in range(1, 8):
        cmul(p, Q0, E256, P[2*e], TM)
        put_row(e, Q0)
        if e == 1:
            mfmas(0)
    for base, G in ((8, G2), (12, G3)):
        put_row(base, G)
        for e in range(1, 4):
            cmul(p, Q0, G, P[4*e], TM)
            put_row(base+e, Q0)
    read_frags(fA)
    cur, nxt = G3, G2
    for kk in range(4):
        cmul(p, nxt, cur, E256, TM)
        put_row(2*kk, nxt)
        cmul(p, Q0, nxt, P[8], TM)
        put_row(2*kk+1, Q0)
        cur, nxt = nxt, cur
        if kk == 0:
            mfmas(1)
    cmul(p, nxt, cur, E256, TM)
    put_row(8, nxt)
    read_frags(fA)
    p(f"ds_write_b128 {v(aT0)}, {v(acc, 4)}")
    p(f"ds_write_b128 {v(aT1)}, {v(acc+4, 4)} offset:1024")
    mfmas(2)
    p(f"ds_write_b64 {v(aT2)}, {v(acc+8, 2)} offset:2048")
    p(f"ds_write_b64 {v(aT2)}, {v(acc+10, 2)} offset:{2048+128}")

    g = scratch
    w = scratch + 16
    p(f"""
v_lshlrev_b32 {v(t+2)}, 2, {LANE}
v_sub_u32 {v(t+2)}, {v(aQ)}, {v(t+2)}
ds_read_b128 {v(g+8, 4)}, {v(aG3)}
ds_read_b128 {v(g+12, 4)}, {v(aG3)} offset:16
ds_read_b64 {v(g+4, 2)}, {v(t+2)} offset:{384*4 + 63*4}
ds_read_b32 {v(g+6)}, {v(t+2)} offset:{384*4 + 63*4 + 8}
ds_read_b32 {v(g+2)}, {v(aQ)} offset:{512*4}
ds_read_b32 {v(g+3)}, {v(aQ)} offset:{512*4 + 4}
ds_read_b32 {v(g)}, {v(aQ)} offset:{576*4}
ds_read_b32 {v(g+1)}, {v(aQ)} offset:{576*4 + 4}
v_and_b32 {v(t+3)}, 3, {LANE}
v_bfe_u32 {v(t+4)}, {LANE}, 2, 2
v_mul_u32_u24 {v(t+4)}, {KC_COPY}, {v(t+4)}
v_lshl_add_u32 {v(t+4)}, {v(t+3)}, 4, {v(t+4)}
v_add_u32 {v(t+4)}, s4, {v(t+4)}
ds_write_b128 {v(t+4)}, {v(R.st, 4)} offset:4096
v_and_b32 {v(t+3)}, 1, {LANE}
v_cmp_eq_u32 vcc, 0, {v(t+3)}
""")
    cv = lambda d, lo, hi: p(f"v_cvt_pk_bf16_f32 {v(d)}, {v(lo)}, {v(hi)}")
    k = g + 8
    d = w + 36
    for j, (lo, hi) in enumerate(((7, 6), (5, 4), (3, 2), (1, 0))):
        cv(d+j, k+lo, k+hi)
    p("s_mov_b32 exec_hi, 0")
    for j, (lo, hi) in enumerate(((4, 3), (2, 2), (2, 1), (0, 0))):
        cv(d+j, k+lo, k+hi)
    p("s_mov_b32 exec_hi, -1")
    p(f"ds_write_b128 {v(aK)}, {v(d, 4)} offset:3072")
    d = w + 24
    for j, (lo, hi) in enumerate(((6, 6), (5, 5), (5, 4), (4, 4))):
        cv(d+j, g+lo, g+hi)
    p(f"ds_write_b128 {v(aK)}, {v(d, 4)} offset:2048")
    for q in (1, 0):
        d = w + 12*q
        ra, rb = g + 2*q, g + 2*q + 1
        p(f"v_cndmask_b32 {v(t+3)}, {v(ra)}, {v(rb)}, vcc")
        cv(d, rb, rb)
        cv(d+2, ra, ra)
        cv(d+3, ra, ra)
        cv(d+1, rb, t+3)
        p(f"ds_write_b128 {v(aK)}, {v(d, 4)} offset:{1024*q}")
    for q in (3, 2, 1, 0):
        d = w + 12*q
        p(f"v_add_u32 {v(t+q)}, {1024*q}, {v(aK)}")
        p(f"ds_read_b64 {v(d+4, 2)}, {v(aK)} offset:{1024*q + 16}")
        for j in range(3):
            p(f"ds_read2_b32 {v(d+6+2*j, 2)}, {v(t+q)} offset0:{1+2*j} offset1:{2+2*j}")
    for q in (3, 2, 1, 0):
        d = w + 12*q
        p(f"ds_write_b128 {v(aK)}, {v(d+2, 4)} offset:{1024*q + 2*KC_COPY}")
        p(f"ds_write_b128 {v(aK)}, {v(d+6, 4)} offset:{1024*q + KC_COPY}")
        p(f"ds_write_b128 {v(aK)}, {v(d+8, 4)} offset:{1024*q + 3*KC_COPY}")
    p(f"""
v_lshlrev_b32 {v(R.dsk)}, 16, {v(R.dsk)}
v_and_b32 {v(t)}, 15, {LANE}
v_lshrrev_b32 {v(t+1)}, 4, {LANE}
v_lshlrev_b32 {v(t+1)}, 2, {v(t+1)}
v_sub_u32 {v(t)}, {v(t)}, {v(t+1)}
""")
    for j in range(4):
        p(f"v_cmp_eq_u32 s[{6+2*j}:{7+2*j}], {j}, {v(t)}")
    for j in range(4):
        p(f"v_cndmask_b32 {v(R.dfrag+j)}, 0, {v(R.dsk)}, s[{6+2*j}:{7+2*j}]")


def conv_xprep(p, R):
    A = Alloc(R.base)
    R.xf = A(32, 4)
    R.pk = A(32, 4)
    p("s_mov_b32 s4, 0x05040100\ns_mov_b32 s5, 0x07060302")
    p(f"s_lshl_b32 s6, {S_WAVE}, 10\ns_add_u32 s6, s6, {XC_LDS}\nv_lshl_add_u32 {v(R.t)}, {LANE}, 4, s6")
    for c in range(4):
        for j in range(4):
            lo, hi = R.x + 4*j + c//2, R.x + 4*j + 2 + c//2
            p(f"v_perm_b32 {v(R.pk+4*c+j)}, {v(hi)}, {v(lo)}, s{4 + (c & 1)}")
        p(f"ds_write_b128 {v(R.t)}, {v(R.pk+4*c, 4)} offset:{c*XC_CH}")
    for i in range(8):
        for hpair in range(2):
            p(f"v_lshlrev_b32 {v(R.xf+4*i+2*hpair)}, 16, {v(R.x+2*i+hpair)}")
            p(f"v_and_b32 {v(R.xf+4*i+2*hpair+1)}, 0xffff0000, {v(R.x+2*i+hpair)}")


def conv_stat_loads(p, R, ldflag):
    for k in range(4):
        p(f"s_mov_b32 s4, {k*4096}\nbuffer_load_dwordx4 {v(R.st+4*k, 4)}, {v(R.aSt)}, {SRD_WS}, s4 offen {ldflag}")


def conv_normalize(p, R):
    for i in range(8):
        for hpair in range(2):
            r = R.xf + 4*i + 2*hpair
            p(f"v_pk_fma_f32 {v(r, 2)}, {v(r, 2)}, {v(R.st+2*i, 2)}, {v(R.st+2*i, 2)} op_sel:[0,0,1] op_sel_hi:[1,0,1]")
    u = lambda i, c: v(R.xf + 4*i + c)
    for c in range(4):
        d = R.pk + 8*c
        for j in range(4):
            p(f"v_cvt_pk_bf16_f32 {v(d+j)}, {u(2*j, c)}, {u(2*j+1, c)}")
        p(f"ds_write_b128 {v(R.aUw)}, {v(d, 4)} offset:{c*UC_CH + UC_COPY}")
        for j in range(4):
            p(f"v_cvt_pk_bf16_f32 {v(d+4+j)}, {'0' if j == 0 else u(2*j-1, c)}, {u(2*j, c)}")
        p(f"ds_write_b128 {v(R.aUw)}, {v(d+4, 4)} offset:{c*UC_CH}")
    p("s_waitcnt lgkmcnt(0)\ns_barrier")
    for c in range(4):
        p(f"ds_write_b16_d16_hi {v(R.aFix)}, {v(R.pk+8*c+3)} offset:{c*UC_CH}")


def conv_main(p, R, stflag):
    A = Alloc(R.base)
    acc = A(32, 4)
    xg = A(16, 4)
    A.n = max(A.n, R.pk + 32)
    buf = [A(48, 4), A(48, 4)]
    ac = lambda par, c: acc + 16*par + 4*c
    fa = lambda b, e: buf[b] + 4*e
    fb = lambda b, par, f: buf[b] + 16 + 16*par + 4*f

    def reads(dl, which='AB'):
        b = dl & 1
        L = []
        order = [('A', 0, 0), ('B', 1, 0), ('B', 0, 0), ('B', 1, 1), ('B', 0, 1), ('A', 1, 0), ('B', 1, 2), ('B', 0, 2),
                 ('A', 2, 0), ('B', 1, 3), ('B', 0, 3), ('A', 3, 0)]
        for kind, x, y in order:
            if kind not in which:
                continue
            if kind == 'A':
                L.append(Ins(f"ds_read_b128 {v(fa(b, x), 4)}, {v(R.aA)} offset:{(252 - 4*(dl + 16*x))*16}"))
            else:
                L.append(Ins(f"ds_read_b128 {v(fb(b, x, y), 4)}, {v(R.aB)} offset:{x*UC_COPY + (16 + 16*y - dl)*16}"))
        return L

    def mf(dl):
        b = dl & 1
        L = []
        for e, f in ((0, 0), (0, 1), (1, 0), (1, 1), (0, 2), (2, 0), (1, 2), (2, 1), (0, 3), (3, 0)):
            for par in (1, 0):
                d = v(ac(par, e+f), 4)
                L.append(Ins(f"v_mfma_f32_16x16x32_bf16 {d}, {v(fa(b, e), 4)}, {v(fb(b, par, f), 4)}, {d}"))
        if dl == 0:
            for f in range(4):
                for par in (1, 0):
                    d = v(ac(par, f), 4)
                    L.append(Ins(f"v_mfma_f32_16x16x32_bf16 {d}, {v(R.dfrag, 4)}, {v(fb(b, par, f), 4)}, {d}"))
        return L

    for c in range(4):
        p(f"ds_read_b128 {v(xg+4*c, 4)}, {v(R.aXr)} offset:{c*256}")
    p.add(reads(0, 'A'))
    p("s_waitcnt lgkmcnt(0)\ns_barrier")
    p.add(reads(0, 'B'))
    for c in range(4):
        for r in range(4):
            p(f"v_lshlrev_b32 {v(ac(0, c)+r)}, 16, {v(xg+4*c+r)}")
            p(f"v_and_b32 {v(ac(1, c)+r)}, 0xffff0000, {v(xg+4*c+r)}")
    for dl in range(16):
        p.add(interleave(mf(dl), reads(dl+1) if dl < 15 else [], 1))
    o = buf[0]
    for c in range(4):
        for par in (1, 0):
            d = o + 4*c + 2*par
            p(f"v_cvt_pk_bf16_f32 {v(d)}, {v(ac(par, c))}, {v(ac(par, c)+1)}")
            p(f"v_cvt_pk_bf16_f32 {v(d+1)}, {v(ac(par, c)+2)}, {v(ac(par, c)+3)}")
            p(f"ds_write_b64 {v(R.aHw)}, {v(d, 2)} offset:{par*2112 + c*128}")
    p("s_waitcnt lgkmcnt(0)\ns_barrier")
    o = buf[1]
    for it in range(4):
        for par in range(2):
            p(f"ds_read_b64_tr_b16 {v(o+4*it+2*par, 2)}, {v(R.aHr)} offset:{par*2112 + it*32}")
    for it in range(4):
        p(f"s_mov_b32 s4, {it*4*40960}")
        p(f"buffer_store_dwordx4 {v(o+4*it, 4)}, {v(R.aHg)}, {SRD_WS}, s4 offen {stflag}", tag='hst')


S_RB, S_CB, S_SG, S_DT = 's64', 's65', 's66', 's67'


def ffn_coords(p):
    p(f"""
s_and_b32 s4, s2, 7
s_lshr_b32 s5, s2, 3
s_and_b32 {S_SG}, s4, 1
s_and_b32 {S_DT}, s5, 7
s_lshr_b32 s4, s4, 1
s_lshl_b32 s4, s4, 2
s_lshr_b32 s5, s5, 3
s_add_u32 {S_RB}, s4, s5
s_lshl_b32 s4, {S_SG}, 3
s_add_u32 {S_CB}, s4, {S_DT}
""")


H_SLOT = 40960
EX_LDS = 3 * H_SLOT
S2_LDS = EX_LDS + 24576
G1_LDS_END = S2_LDS + 256


def stats2_loads(p, r0, ldflag):
    t = r0 + 12
    p(f"""
s_lshl_b32 s4, {S_RB}, 2
s_lshr_b32 s5, {S_CB}, 2
s_add_u32 s4, s4, s5
s_mul_i32 s4, s4, 40960
s_and_b32 s5, {S_CB}, 3
s_lshl_b32 s5, s5, 6
s_add_u32 s4, s4, s5
s_mul_i32 s5, {S_WAVE}, 10240
s_add_u32 s4, s4, s5
s_add_u32 s4, s4, {WS_H}
v_lshrrev_b32 {v(t)}, 2, {LANE}
v_lshlrev_b32 {v(t)}, 8, {v(t)}
v_and_b32 {v(t+1)}, 3, {LANE}
v_lshl_add_u32 {v(t)}, {v(t+1)}, 4, {v(t)}
v_add_u32 {v(t)}, s4, {v(t)}
v_add_u32 {v(t+1)}, 4096, {v(t)}
v_add_u32 {v(t+2)}, 8192, {v(t)}
v_mov_b32 {v(t+3)}, {OOB}
v_cmp_gt_u32 vcc, 32, {LANE}
v_cndmask_b32 {v(t+2)}, {v(t+3)}, {v(t+2)}, vcc
""")
    for k in range(3):
        p(f"buffer_load_dwordx4 {v(r0+4*k, 4)}, {v(t+k)}, {SRD_WS}, 0 offen {ldflag}")


def stats2_partial(p, r0):
    t = r0 + 12
    p("s_mov_b32 s4, 0x3f803f80")
    for k in range(4):
        p(f"v_mov_b32 {v(t+k)}, 0")
    for k in range(3):
        for j in range(4):
            e = j >> 1
            p(f"v_dot2c_f32_bf16 {v(t+2*e)}, s4, {v(r0+4*k+j)}")
            p(f"v_dot2c_f32_bf16 {v(t+2*e+1)}, {v(r0+4*k+j)}, {v(r0+4*k+j)}")
    p(f"""
v_permlane32_swap_b32 {v(t)}, {v(t+2)}
v_permlane32_swap_b32 {v(t+1)}, {v(t+3)}
v_add_f32 {v(t)}, {v(t)}, {v(t+2)}
v_add_f32 {v(t+1)}, {v(t+1)}, {v(t+3)}
v_and_b32 {v(t+4)}, 3, {LANE}
v_lshrrev_b32 {v(t+5)}, 4, {LANE}
v_permlane16_swap_b32 {v(t)}, {v(t+1)}
v_lshl_add_u32 {v(t+4)}, {v(t+4)}, 2, {v(t+5)}
v_add_f32 {v(t)}, {v(t)}, {v(t+1)}
s_lshl_b32 s4, {S_WAVE}, 2
s_add_u32 s4, s4, {S2_LDS}
v_add_f32_dpp {v(t)}, {v(t)}, {v(t)} row_ror:4 row_mask:0xf bank_mask:0xf
v_lshl_add_u32 {v(t+4)}, {v(t+4)}, 4, s4
v_add_f32_dpp {v(t)}, {v(t)}, {v(t)} row_ror:8 row_mask:0xf bank_mask:0xf
ds_write_b32 {v(t+4)}, {v(t)}
""")


def stats2_final(p, r0, stflag):
    t = r0 + 12
    p(f"""
v_and_b32 {v(t+4)}, 7, {LANE}
v_lshlrev_b32 {v(t+5)}, 5, {v(t+4)}
v_add_u32 {v(t+5)}, {S2_LDS}, {v(t+5)}
ds_read_b128 {v(r0, 4)}, {v(t+5)}
ds_read_b128 {v(r0+4, 4)}, {v(t+5)} offset:16
s_lshl_b32 s4, {S_RB}, 4
s_add_u32 s4, s4, {S_CB}
s_lshl_b32 s4, s4, 6
s_add_u32 s4, s4, {WS_ST2}
v_lshl_add_u32 {v(t+4)}, {v(t+4)}, 3, s4
v_mov_b32 {v(t+5)}, {OOB}
v_cmp_gt_u32 vcc, 8, {LANE}
v_cndmask_b32 {v(t+4)}, {v(t+5)}, {v(t+4)}, vcc
v_add_f32 {v(r0)}, {v(r0)}, {v(r0+1)}
v_add_f32 {v(r0+2)}, {v(r0+2)}, {v(r0+3)}
v_add_f32 {v(r0+4)}, {v(r0+4)}, {v(r0+5)}
v_add_f32 {v(r0+6)}, {v(r0+6)}, {v(r0+7)}
v_add_f32 {v(r0)}, {v(r0)}, {v(r0+2)}
v_add_f32 {v(r0+4)}, {v(r0+4)}, {v(r0+6)}
""")
    ln_finalize(p, r0, r0+4, r0+1, r0+3, r0+2)
    p(f"v_xor_b32 {v(r0+3)}, 0x80000000, {v(r0+3)}")
    p(f"buffer_store_dwordx2 {v(r0+2, 2)}, {v(t+4)}, {SRD_WS}, 0 offen {stflag}", tag='st2')


class G1Regs:
    def __init__(self):
        A = Alloc(2)
        self.aL16 = A()
        self.aHr = A()
        self.aExW = A()
        self.aExR = A()
        self.aGa = A()
        self.aGb = A()
        self.acc = [A(48, 4), A(48, 4)]
        self.cs = A(24, 4)
        self.fr = A(16, 4)
        self.st = A(8, 2)
        self.k = A(4, 2)
        self.t = A(12, 4)
        self.o = A(8, 4)
        self.tmp = A(24, 4)
        self.end = A.n


def w_loads(base_sgpr, vaddr, idx, ldflag, tag):
    L = []
    if idx % 4 == 0:
        L.append(Ins(f"s_add_u32 s{base_sgpr+1}, s{base_sgpr}, {idx*1024}"))
    L.append(Ins(f"buffer_load_dwordx4 {a(4*idx, 4)}, {v(vaddr)}, {SRD_WS}, s{base_sgpr+1} offen offset:{(idx%4)*1024} {ldflag}", tag))
    return L


def g1_setup(p, R):
    t = R.t
    p(f"""
v_lshlrev_b32 {v(R.aL16)}, 4, {LANE}
s_lshr_b32 s4, {S_WAVE}, 1
s_mul_i32 s5, s4, 20480
v_lshl_add_u32 {v(R.aHr)}, {LANE}, 3, s5
s_mul_i32 s5, {S_WAVE}, 6144
s_add_u32 s5, s5, {EX_LDS}
v_add_u32 {v(R.aExW)}, s5, {v(R.aL16)}
s_xor_b32 s5, {S_WAVE}, 2
s_mul_i32 s5, s5, 6144
s_add_u32 s5, s5, {EX_LDS}
v_add_u32 {v(R.aExR)}, s5, {v(R.aL16)}
s_mul_i32 s5, {S_RB}, {4*2*49152}
s_lshl_b32 s6, {S_CB}, 2
s_add_u32 s6, s6, {S_WAVE}
s_mul_i32 s7, s6, 768
s_add_u32 s5, s5, s7
s_add_u32 s5, s5, {WS_G}
v_bfe_u32 {v(t)}, {LANE}, 4, 1
v_mul_u32_u24 {v(t)}, 49152, {v(t)}
v_and_b32 {v(t+1)}, 15, {LANE}
v_lshl_add_u32 {v(t)}, {v(t+1)}, 4, {v(t)}
v_add_u32 {v(t)}, s5, {v(t)}
v_lshrrev_b32 {v(t+1)}, 5, {LANE}
v_lshl_add_u32 {v(R.aGa)}, {v(t+1)}, 8, {v(t)}
v_add_u32 {v(t)}, 512, {v(t)}
v_mov_b32 {v(t+2)}, {OOB}
v_cmp_gt_u32 vcc, 32, {LANE}
v_cndmask_b32 {v(R.aGb)}, {v(t+2)}, {v(t)}, vcc
s_mul_i32 s68, s6, 61440
s_add_u32 s68, s68, {WS_W1P}
s_lshl_b32 s6, {S_DT}, 2
s_add_u32 s6, s6, {S_WAVE}
s_mul_i32 s70, s6, 61440
s_add_u32 s70, s70, {WS_W2P}
s_mul_i32 s72, {S_RB}, {4*40960}
s_mul_i32 s73, {S_WAVE}, 10240
s_add_u32 s72, s72, s73
s_add_u32 s72, s72, {WS_H}
""")


def g1_wloads(p, R, ldflag):
    for i in range(60):
        p.add(w_loads(68, R.aL16, i, ldflag, 'w1'))


def g1_cs_loads(p, R, ldflag):
    t = R.t
    p(f"""
s_mul_i32 s4, {S_CB}, 96
s_and_b32 s5, {S_WAVE}, 1
s_mul_i32 s5, s5, 48
s_add_u32 s4, s4, s5
s_lshr_b32 s5, {S_WAVE}, 1
s_lshl_b32 s5, s5, 3
s_add_u32 s4, s4, s5
s_lshl_b32 s4, s4, 2
s_add_u32 s4, s4, {WS_CS}
v_lshrrev_b32 {v(t)}, 5, {LANE}
v_lshl_add_u32 {v(t)}, {v(t)}, 4, s4
""")
    for kh in range(2):
        for m in range(2):
            p(f"s_mov_b32 s4, {(2*kh+m)*6144}")
            for tau in range(3):
                d = (R.cs, R.tmp)[kh] + 8*tau + 4*m
                p(f"buffer_load_dwordx4 {v(d, 4)}, {v(t)}, {SRD_WS}, s4 offen offset:{tau*64} {ldflag}")


def g1_cs_sum(p, R):
    for i in range(0, 24, 2):
        p(f"v_pk_add_f32 {v(R.cs+i, 2)}, {v(R.cs+i, 2)}, {v(R.tmp+i, 2)}")


def g1_dma(R, tt, ldflag):
    L = []
    for i in range(10):
        if i % 4 == 0:
            L.append(Ins(f"s_add_u32 s74, s73, {(tt % 3)*H_SLOT + i*1024}"))
            L.append(Ins(f"s_mov_b32 m0, s74"))
            L.append(Ins(f"s_add_u32 s74, s72, {tt*40960 + i*1024}"))
        L.append(Ins(f"buffer_load_dwordx4 {v(R.aL16)}, {SRD_WS}, s74 offen offset:{(i%4)*1024} {ldflag} lds", f'h{tt}'))
    return L


def g1_stat_loads(p, R, ldflag):
    t = R.t
    p(f"""
s_lshl_b32 s4, {S_RB}, 10
s_add_u32 s4, s4, {WS_ST2}
v_and_b32 {v(t)}, 31, {LANE}
v_lshl_add_u32 {v(t)}, {v(t)}, 3, s4
""")
    for tt in range(4):
        p(f"buffer_load_dwordx2 {v(R.st+2*tt, 2)}, {v(t)}, {SRD_WS}, 0 offen offset:{tt*256} {ldflag}")


GC1 = -2.0 * 0.7978845608028654 * LOG2E
GC2 = GC1 * 0.044715


def g1_send(R, tt):
    A = R.acc[tt & 1]
    return [Ins(f"ds_write_b128 {v(R.aExW)}, {v(A+16*tau+4+8*m, 4)} offset:{(2*tau+m)*1024}")
            for tau in range(3) for m in range(2)]


def g1_recv(R, tt):
    A = R.acc[tt & 1]
    return [Ins(f"ds_read_b128 {v(A+16*tau+4+8*m, 4)}, {v(R.aExR)} offset:{(2*tau+m)*1024}")
            for tau in range(3) for m in range(2)]


def g1_epilogue(R, tt, stflag):
    A = R.acc[tt & 1]
    P = Prog()
    sd, nm = R.st + 2*tt, R.st + 2*tt + 1
    k1, k2, s2 = R.k, R.k + 1, R.k + 2
    P(f"""
v_rcp_f32 {v(k1)}, {v(sd)}
v_mul_f32 {v(s2)}, {v(sd)}, {v(sd)}
v_mul_f32 {v(k2)}, {v(k1)}, {v(k1)}
v_mul_f32 {v(k2)}, {v(k2)}, {v(k1)}
v_mul_f32 {v(k1)}, {f32(GC1)}, {v(k1)}
v_mul_f32 {v(k2)}, {f32(GC2)}, {v(k2)}
""")
    for tau in range(3):
        g, u = A + 16*tau, A + 16*tau + 8
        T = R.t
        for r in range(4):
            P(f"v_fma_f32 {v(g+r)}, {v(nm)}, {v(R.cs+8*tau+r)}, {v(g+r)}")
        for r in range(4):
            P(f"v_add_f32 {v(g+r)}, {v(g+r)}, {v(g+4+r)}")
        for r in range(4):
            P(f"v_mul_f32 {v(T+r)}, {v(g+r)}, {v(g+r)}")
        for r in range(4):
            P(f"v_fma_f32 {v(T+r)}, {v(T+r)}, {v(k2)}, {v(k1)}")
        for r in range(4):
            P(f"v_mul_f32 {v(T+r)}, {v(T+r)}, {v(g+r)}")
        for r in range(4):
            P(f"v_exp_f32 {v(T+r)}, {v(T+r)}")
            P(f"v_fma_f32 {v(u+r)}, {v(nm)}, {v(R.cs+8*tau+4+r)}, {v(u+r)}")
            P(f"v_add_f32 {v(u+r)}, {v(u+r)}, {v(u+4+r)}")
        for r in range(4):
            P(f"v_fma_f32 {v(T+r)}, {v(T+r)}, {v(s2)}, {v(s2)}")
        for r in range(4):
            P(f"v_rcp_f32 {v(T+r)}, {v(T+r)}")
            P(f"v_mul_f32 {v(g+r)}, {v(g+r)}, {v(u+r)}")
        for r in range(4):
            P(f"v_mul_f32 {v(g+r)}, {v(g+r)}, {v(T+r)}")
        P(f"v_cvt_pk_bf16_f32 {v(R.o+2*tau)}, {v(g)}, {v(g+1)}")
        P(f"v_cvt_pk_bf16_f32 {v(R.o+2*tau+1)}, {v(g+2)}, {v(g+3)}")
        if tau == 1:
            P(f"s_mov_b32 s75, {tt*2*49152}")
            P(f"buffer_store_dwordx4 {v(R.o, 4)}, {v(R.aGa)}, {SRD_WS}, s75 offen {stflag}", tag=f'g{tt}')
    P(f"v_permlane32_swap_b32 {v(R.o+4)}, {v(R.o+6)}")
    P(f"v_permlane32_swap_b32 {v(R.o+5)}, {v(R.o+7)}")
    P(f"buffer_store_dwordx4 {v(R.o+4, 4)}, {v(R.aGb)}, {SRD_WS}, s75 offen {stflag}", tag=f'g{tt}')
    return P.items


def slots(i):
    return 2 if (i.kind == 'valu' and i.trans) else (0 if i.kind in ('wait_vm', 'flush') else 1)


def pack_gaps(main, fixed, queue, cap):
    out, j = [], 0
    for g, m in enumerate(main):
        out.append(m)
        used = 0
        for it in fixed.get(g, []):
            out.append(it)
            used += slots(it)
        while j < len(queue) and queue[j][0] <= g and used + slots(queue[j][1]) <= cap:
            out.append(queue[j][1])
            used += slots(queue[j][1])
            j += 1
    out += [q[1] for q in queue[j:]]
    return out


def g1_main(p, R, ldflag, stflag, w2flag=None, cap=5):
    AH = 3

    def hread(gs):
        tt, s = divmod(gs, 20)
        o = ((tt % 3)*H_SLOT + s*1024) // 512
        return Ins(f"ds_read2st64_b64 {v(R.fr+4*(gs % 4), 4)}, {v(R.aHr)} offset0:{o} offset1:{o+1}")

    def wv(tag):
        q = Prog()
        q.wait_vm(tag)
        return q.items[0]

    p.wait_vm('h0')
    p("s_barrier")
    for gs in range(AH):
        p.add([hread(gs)])
    for tt in range(4):
        A = R.acc[tt & 1]
        main, fixed, queue = [], {}, []
        for s in range(20):
            for tau in range(3):
                d = v(A+16*tau, 16)
                main.append(Ins(f"v_mfma_f32_32x32x16_bf16 {d}, {a(12*s+4*tau, 4)}, {v(R.fr+4*((20*tt+s) % 4), 4)}, {'0' if s == 0 else d}"))
            if 20*tt + s + AH < 80:
                fixed.setdefault(3*s, []).append(hread(20*tt + s + AH))
        if tt >= 1:
            snd = g1_send(R, tt-1)
            for i, it in enumerate(snd):
                fixed.setdefault(1 + i, []).append(it)
        if tt >= 1:
            fixed.setdefault(9, []).extend([Ins("s_waitcnt lgkmcnt(1)"), Ins("s_barrier")])
        fixed.setdefault(43, []).extend(([wv(f'h{tt+1}')] if tt < 3 else []) + [Ins("s_barrier")])
        if tt >= 1:
            for i, it in enumerate(g1_recv(R, tt-1)):
                fixed.setdefault(10 + i//2, []).append(it)
            queue += [(13, it) for it in g1_epilogue(R, tt-1, stflag)]
        if tt == 1:
            for i, it in enumerate(g1_dma(R, 3, ldflag)):
                fixed.setdefault(11 + 2*i, []).append(it)
        if tt == 3 and w2flag is not None:
            for i in range(28):
                fixed.setdefault(3 + 2*i, []).extend(w_loads(70, R.aL16, i, w2flag, 'w2'))
        p.add(pack_gaps(main, fixed, queue, cap))
    p.add(g1_send(R, 3))
    p("s_waitcnt lgkmcnt(0)\ns_barrier")
    p.add(g1_recv(R, 3))
    tail = g1_epilogue(R, 3, stflag)
    if w2flag is not None:
        rest = [w_loads(70, R.aL16, i, w2flag, 'w2') for i in range(28, 60)]
        out = []
        for i, it in enumerate(tail):
            out.append(it)
            if i % 4 == 3 and rest:
                out += rest.pop(0)
        for r in rest:
            out += r
        tail = out
    p.add(tail)


RED_G, RED_D, RED_W, RED_SLOT = 288, 1152, 5760, 23040


class G2Regs:
    def __init__(self):
        A = Alloc(2)
        self.aL16 = A()
        self.aRw = A()
        self.aRr = A()
        self.aHres = A()
        self.aOut = A()
        self.t = A(4, 4)
        self.fr = [A(48, 4), A(48, 4)]
        self.acc = [A(20, 4), A(20, 4)]
        self.res = A(16, 4)
        self.pt = A(32, 4)
        self.o = A(4, 4)


def g2_setup(p, R):
    t = R.t
    p(f"""
v_lshlrev_b32 {v(R.aL16)}, 4, {LANE}
s_mul_i32 s4, {S_WAVE}, {RED_W}
v_lshrrev_b32 {v(t)}, 4, {LANE}
v_mul_u32_u24 {v(t)}, {RED_G}, {v(t)}
v_and_b32 {v(t+1)}, 15, {LANE}
v_lshl_add_u32 {v(t)}, {v(t+1)}, 4, {v(t)}
v_add_u32 {v(R.aRw)}, s4, {v(t)}
v_lshrrev_b32 {v(t)}, 2, {LANE}
v_min_u32 {v(t)}, 9, {v(t)}
v_and_b32 {v(t+1)}, 3, {LANE}
s_lshl_b32 s4, {S_WAVE}, 2
v_add_u32 {v(t+1)}, s4, {v(t+1)}
v_mul_u32_u24 {v(t+2)}, {2*RED_G}, {v(t)}
v_lshl_add_u32 {v(R.aRr)}, {v(t+1)}, 4, {v(t+2)}
s_lshl_b32 s4, {S_SG}, 4
v_add_u32 {v(t+1)}, s4, {v(t+1)}
s_mul_i32 s4, {S_RB}, {4*40960}
s_mul_i32 s5, {S_DT}, {20*256}
s_add_u32 s4, s4, s5
s_add_u32 s4, s4, {WS_H}
v_lshlrev_b32 {v(t+2)}, 9, {v(t)}
v_lshl_add_u32 {v(t+2)}, {v(t+1)}, 3, {v(t+2)}
v_add_u32 {v(R.aHres)}, s4, {v(t+2)}
s_mul_i32 s4, {S_RB}, {128*1280}
s_mul_i32 s5, {S_DT}, 160
s_add_u32 s4, s4, s5
v_mul_u32_u24 {v(t+2)}, 1280, {v(t+1)}
v_lshl_add_u32 {v(t+2)}, {v(t)}, 4, {v(t+2)}
v_add_u32 {v(t+2)}, s4, {v(t+2)}
v_mov_b32 {v(t+3)}, {OOB}
v_cmp_gt_u32 vcc, 40, {LANE}
v_cndmask_b32 {v(R.aOut)}, {v(t+3)}, {v(t+2)}, vcc
s_lshl_b32 s4, {S_RB}, 3
s_add_u32 s4, s4, {S_SG}
s_mul_i32 s76, s4, 49152
s_mul_i32 s5, {S_WAVE}, 12288
s_add_u32 s76, s76, s5
s_add_u32 s76, s76, {WS_G}
""")


def g2_res_loads(p, R, ldflag):
    for tt in range(4):
        p(f"s_mov_b32 s4, {tt*40960}")
        for k in range(2):
            p(f"buffer_load_dwordx2 {v(R.res+4*tt+2*k, 2)}, {v(R.aHres)}, {SRD_WS}, s4 offen offset:{k*256} {ldflag}")


def g2_gloads(R, tt, ldflag):
    L = []
    for s in range(12):
        grp = []
        if s % 4 == 0:
            grp.append(Ins(f"s_add_u32 s77, s76, {tt*2*49152 + s*1024}"))
        grp.append(Ins(f"buffer_load_dwordx4 {v(R.fr[tt & 1]+4*s, 4)}, {v(R.aL16)}, {SRD_WS}, s77 offen offset:{(s%4)*1024} {ldflag}"))
        L.append(grp)
    return L


def g2_send(R, tt):
    return [Ins(f"ds_write_b128 {v(R.aRw)}, {v(R.acc[tt & 1]+4*d, 4)} offset:{(tt & 1)*RED_SLOT + d*RED_D}") for d in range(5)]


def g2_final(R, tt):
    P = Prog()
    for w in range(4):
        for k in range(2):
            P(f"ds_read_b128 {v(R.pt+8*w+4*k, 4)}, {v(R.aRr)} offset:{(tt & 1)*RED_SLOT + w*RED_W + k*RED_G}")
    for j in range(8):
        P(f"v_add_f32 {v(R.pt+j)}, {v(R.pt+j)}, {v(R.pt+8+j)}")
    for j in range(4):
        P(f"v_lshlrev_b32 {v(R.pt+8+2*j)}, 16, {v(R.res+4*tt+j)}")
        P(f"v_and_b32 {v(R.pt+8+2*j+1)}, 0xffff0000, {v(R.res+4*tt+j)}")
    for j in range(8):
        P(f"v_add_f32 {v(R.pt+16+j)}, {v(R.pt+16+j)}, {v(R.pt+24+j)}")
    for j in range(8):
        P(f"v_add_f32 {v(R.pt+j)}, {v(R.pt+j)}, {v(R.pt+8+j)}")
    for j in range(8):
        P(f"v_add_f32 {v(R.pt+j)}, {v(R.pt+j)}, {v(R.pt+16+j)}")
    for j in range(4):
        P(f"v_cvt_pk_bf16_f32 {v(R.o+j)}, {v(R.pt+2*j)}, {v(R.pt+2*j+1)}")
    P(f"s_mov_b32 s78, {tt*32*1280}")
    P(f"buffer_store_dwordx4 {v(R.o, 4)}, {v(R.aOut)}, {SRD_OUT}, s78 offen")
    return P.items


def g2_main(p, R, ldflag, gate=None):
    for tt in range(2):
        if gate:
            gate(p, tt)
        for grp in g2_gloads(R, tt, ldflag):
            p.add(grp)
    for tt in range(4):
        main, fixed, queue = [], {}, []
        for s in range(12):
            for d in range(5):
                c = v(R.acc[tt & 1]+4*d, 4)
                main.append(Ins(f"v_mfma_f32_16x16x32_bf16 {c}, {a(20*s+4*d, 4)}, {v(R.fr[tt & 1]+4*s, 4)}, {'0' if s == 0 else c}"))
        if tt >= 1:
            for i, it in enumerate(g2_send(R, tt-1)):
                fixed.setdefault(3 + i, []).append(it)
            fixed.setdefault(12, []).extend([Ins("s_waitcnt lgkmcnt(0)"), Ins("s_barrier")])
            queue += [(13, it) for it in g2_final(R, tt-1)]
        if tt + 2 < 4 and not gate:
            for s, grp in enumerate(g2_gloads(R, tt+2, ldflag)):
                fixed.setdefault(5*s + 4, []).extend(grp)
        p.add(pack_gaps(main, fixed, queue, 2))
        if tt + 2 < 4 and gate:
            gate(p, tt+2)
            for grp in g2_gloads(R, tt+2, ldflag):
                p.add(grp)
    p.add(g2_send(R, 3))
    p("s_waitcnt lgkmcnt(0)\ns_barrier")
    p.add(g2_final(R, 3))
```

```python
import sys
from phases import *

NAME = 'sequential_preLN__ssm_conv_s4__geglu_ffn__prompt'
REF = open(f'cdna_kernels/{NAME}.s.ref').read()
HEAD = ''.join(l + '\n' for l in REF.split('\n') if l.startswith(';') and '@launch' not in l and 'Override launch' not in l and 'grid=ceil' not in l)


def k_prep():
    p = Prog()
    prologue(p, 96, 'L_kp_end')
    p("s_cmp_ge_u32 s2, 64\ns_cbranch_scc1 L_kp_pack")
    stats1_loads(p, 's2')
    stats1_compute(p, 's2', '')
    p("s_waitcnt vmcnt(0)\nL_kp_pack:")
    pack1_loads(p, 's2')
    pack1_compute(p, 's2', '')
    p("s_waitcnt vmcnt(0)\ns_cmp_ge_u32 s2, 80\ns_cbranch_scc1 L_kp_end")
    pack2_loads(p, 's2')
    pack2_compute(p, 's2', '')
    p("L_kp_end:\ns_endpgm")
    return kernel('kp_kernel', p)


def k_conv():
    p = Prog()
    prologue(p, 160, 'L_kc_end')
    p("s_and_b32 s4, s2, 7\ns_mul_i32 s4, s4, 20\ns_lshr_b32 s5, s2, 3\ns_add_u32 s15, s4, s5")
    R = ConvRegs()
    conv_loads(p, R, 's15')
    conv_addresses(p, R, 's15')
    kgen(p, R)
    conv_stat_loads(p, R, '')
    conv_xprep(p, R)
    conv_normalize(p, R)
    conv_main(p, R, '')
    p("L_kc_end:\ns_endpgm")
    return kernel('kc_kernel', p)


def k_stat2():
    p = Prog()
    prologue(p, 256, 'L_ks_end')
    ffn_coords(p)
    stats2_loads(p, 4, '')
    stats2_partial(p, 4)
    p("s_waitcnt lgkmcnt(0)\ns_barrier")
    stats2_final(p, 4, '')
    p("L_ks_end:\ns_endpgm")
    return kernel('ks_kernel', p)


def k_g1():
    p = Prog()
    prologue(p, 256, 'L_g1_end')
    ffn_coords(p)
    R = G1Regs()
    g1_setup(p, R)
    g1_cs_loads(p, R, '')
    g1_stat_loads(p, R, '')
    p.add(g1_dma(R, 0, ''))
    g1_cs_sum(p, R)
    g1_wloads(p, R, '')
    p("s_waitcnt vmcnt(30)")
    p.add(g1_dma(R, 1, ''))
    p.add(g1_dma(R, 2, ''))
    g1_main(p, R, '', '')
    p("L_g1_end:\ns_endpgm")
    return kernel('g1_kernel', p)


def k_g2():
    p = Prog()
    prologue(p, 256, 'L_g2_end')
    ffn_coords(p)
    R1 = G1Regs()
    g1_setup(p, R1)
    for i in range(60):
        p.add(w_loads(70, R1.aL16, i, '', 'w2'))
    p("s_waitcnt vmcnt(28)")
    R = G2Regs()
    g2_setup(p, R)
    g2_res_loads(p, R, '')
    g2_main(p, R, '')
    p("L_g2_end:\ns_endpgm")
    return kernel('g2_kernel', p)


def build(extra_empty=0):
    s = HEAD
    s += "; @launch kernel=kp_kernel grid=(96,1,1) block=(256,1,1) lds=69632\n"
    s += f"; @launch kernel=kc_kernel grid=(160,1,1) block=(256,1,1) lds={CONV_LDS_END}\n"
    s += f"; @launch kernel=ks_kernel grid=(256,1,1) block=(256,1,1) lds={G1_LDS_END}\n"
    s += f"; @launch kernel=g1_kernel grid=(256,1,1) block=(256,1,1) lds={G1_LDS_END}\n"
    s += f"; @launch kernel=g2_kernel grid=(256,1,1) block=(256,1,1) lds={2*RED_SLOT}\n"
    for _ in range(extra_empty):
        s += f"; @launch kernel=ks_kernel grid=(256,1,1) block=(256,1,1) lds={G1_LDS_END}\n"
    s += '.amdgcn_target "amdgcn-amd-amdhsa--gfx950"\n'
    s += k_prep() + k_conv() + k_stat2() + k_g1() + k_g2()
    return s


if __name__ == '__main__':
    out = sys.argv[1]
    open(out, 'w').write(build(int(sys.argv[2]) if len(sys.argv) > 2 else 0))
```

```python
from asmlib import *
import struct

WS_ST1, WS_ST2, WS_CS, WS_FLAG, WS_CF = 0, 0x4000, 0x8000, 0x10000, 0x18000
WS_W1P, WS_W2P, WS_H, WS_G, WS_SIZE = 0x100000, 0x4C0000, 0x6A0000, 0x920000, 0xF20000
OOB = 0x7ffffff0
WS_STAMP = 0x40000
STAMPS = False


def stamp(p, idx):
    if not STAMPS:
        return
    p(f"""
s_memrealtime s[96:97]
s_memtime s[92:93]
s_lshl_b32 s98, s2, 2
s_add_u32 s98, s98, s3
s_lshl_b32 s98, s98, 8
s_add_u32 s98, s98, {WS_STAMP + idx*4}
s_waitcnt lgkmcnt(0)
v_mov_b32 v1, s96
buffer_store_dword v1, off, s[48:51], s98
v_mov_b32 v1, s92
buffer_store_dword v1, off, s[48:51], s98 offset:128
""")

P_X, P_ARE, P_AIM, P_BRE, P_BIM, P_CRE, P_CIM, P_LDT = [f's[{16+2*i}:{17+2*i}]' for i in range(8)]
P_DSK = 's[32:33]'
SRD_WS, SRD_OUT, SRD_W, SRD_DBG = 's[48:51]', 's[52:55]', 's[56:59]', 's[60:63]'
S_WAVE = 's3'
LANE = 'v0'


def f32(x):
    return hex(struct.unpack('<I', struct.pack('<f', x))[0])


class Alloc:
    def __init__(self, start, kind='v', limit=256):
        self.n, self.kind, self.limit = start, kind, limit

    def __call__(self, n=1, align=None):
        align = align or (2 if n > 1 else 1)
        self.n = (self.n + align - 1) // align * align
        r = self.n
        self.n += n
        assert self.n <= self.limit, 'out of registers'
        return r


def v(i, n=1):
    return f'v{i}' if n == 1 else f'v[{i}:{i+n-1}]'


def a(i, n=1):
    return f'a{i}' if n == 1 else f'a[{i}:{i+n-1}]'


def prologue(p, nwg, exit_label, first_stamp=0):
    p(f"""
s_cmp_ge_u32 s2, {nwg}
s_cbranch_scc1 {exit_label}
{'s_memrealtime s[94:95]' if STAMPS else ''}
{'s_memtime s[92:93]' if STAMPS else ''}
s_load_dwordx16 s[16:31], s[0:1], 0
s_load_dwordx16 s[32:47], s[0:1], 64
v_lshrrev_b32 v1, 6, v0
v_and_b32 v0, 63, v0
v_readfirstlane_b32 {S_WAVE}, v1
s_mov_b32 s50, {WS_SIZE}
s_mov_b32 s51, 0x20000
s_mov_b32 s54, 2621440
s_mov_b32 s55, 0x20000
s_mov_b32 s58, 1966080
s_mov_b32 s59, 0x20000
s_mov_b32 s62, 256
s_mov_b32 s63, 0x20000
s_waitcnt lgkmcnt(0)
s_mov_b32 s48, s46
s_mov_b32 s49, s47
s_mov_b32 s52, s42
s_mov_b32 s53, s43
s_mov_b32 s60, s44
s_mov_b32 s61, s45
""")
    if STAMPS:
        p(f"""
s_lshl_b32 s98, s2, 2
s_add_u32 s98, s98, s3
s_lshl_b32 s98, s98, 8
s_add_u32 s98, s98, {WS_STAMP + first_stamp*4}
v_mov_b32 v1, s94
buffer_store_dword v1, off, s[48:51], s98
v_mov_b32 v1, s92
buffer_store_dword v1, off, s[48:51], s98 offset:128
""")


def ln_finalize(p, s1, s2, t, mb, sd):
    p(f"""
v_mul_f32 {v(s1)}, {f32(1/640)}, {v(s1)}
v_mul_f32 {v(s2)}, {f32(1/640)}, {v(s2)}
v_fma_f32 {v(s2)}, -{v(s1)}, {v(s1)}, {v(s2)}
v_max_f32 {v(s2)}, 0, {v(s2)}
v_cvt_pk_bf16_f32 {v(t)}, {v(s1)}, {v(s2)}
v_lshlrev_b32 {v(mb)}, 16, {v(t)}
v_and_b32 {v(t)}, 0xffff0000, {v(t)}
v_add_f32 {v(t)}, {f32(1e-5)}, {v(t)}
v_cvt_pk_bf16_f32 {v(t)}, {v(t)}, {v(t)}
v_and_b32 {v(t)}, 0xffff0000, {v(t)}
v_sqrt_f32 {v(t)}, {v(t)}
v_cvt_pk_bf16_f32 {v(t)}, {v(t)}, {v(t)}
v_and_b32 {v(sd)}, 0xffff0000, {v(t)}
""")


def stats1_loads(p, hi):
    p(f"""
s_lshr_b32 s4, {hi}, 4
s_lshr_b32 s5, {hi}, 2
s_and_b32 s5, s5, 3
s_and_b32 s6, {hi}, 3
s_lshl_b32 s6, s6, 2
s_add_u32 s6, s6, {S_WAVE}
s_lshl_b32 s6, s6, 7
s_lshl_b32 s5, s5, 3
s_lshl_b32 s4, s4, 1
s_add_u32 s6, s6, s5
s_add_u32 s6, s6, s4
v_lshrrev_b32 v2, 4, {LANE}
v_lshlrev_b32 v2, 5, v2
v_bfe_u32 v3, {LANE}, 3, 1
v_add3_u32 v2, v2, v3, s6
v_mul_u32_u24 v2, 1280, v2
v_and_b32 v3, 7, {LANE}
v_lshl_add_u32 v2, v3, 4, v2
""")
    for i in range(10):
        p(f"global_load_dwordx4 {v(8+4*i, 4)}, v2, {P_X} offset:{i*128}")


def stats1_compute(p, hi, stflag):
    p("s_mov_b32 s4, 0x3f803f80")
    for r in range(4, 8):
        p(f"v_mov_b32 {v(r)}, 0")
    for i in range(40):
        p(f"v_dot2c_f32_bf16 {v(4+(i&1))}, s4, {v(8+i)}")
        p(f"v_dot2c_f32_bf16 {v(6+(i&1))}, {v(8+i)}, {v(8+i)}")
    p("v_add_f32 v4, v4, v5\nv_add_f32 v6, v6, v7")
    for d in ('quad_perm:[1,0,3,2]', 'quad_perm:[2,3,0,1]', 'row_half_mirror'):
        p(f"v_add_f32_dpp v4, v4, v4 {d} row_mask:0xf bank_mask:0xf")
        p(f"v_add_f32_dpp v6, v6, v6 {d} row_mask:0xf bank_mask:0xf")
    ln_finalize(p, 4, 6, 5, 7, 8)
    p(f"""
v_rcp_f32 v10, v8
s_lshl_b32 s4, {hi}, 8
s_lshl_b32 s5, {S_WAVE}, 6
s_add_u32 s4, s4, s5
v_or_b32 v10, 1, v10
v_mul_f32 v11, -v7, v10
v_and_b32 v3, 7, {LANE}
v_add_u32 v2, s4, {LANE}
v_cmp_eq_u32 vcc, 0, v3
v_mov_b32 v9, {OOB}
v_cndmask_b32 v2, v9, v2, vcc
buffer_store_dwordx2 v[10:11], v2, {SRD_WS}, 0 offen {stflag}
""", tag='st1')


PW1_LDS, PW2_LDS, PCS_LDS = 0, 40960, 65536


def pack1_loads(p, hi):
    p(f"""
s_bitcmp1_b32 {hi}, 0
s_cselect_b32 s56, s38, s36
s_cselect_b32 s57, s39, s37
s_bfe_u32 s4, {hi}, 0x10001
s_mul_i32 s4, s4, 320
s_mul_i32 s5, {S_WAVE}, 80
s_add_u32 s4, s4, s5
s_mul_i32 s4, s4, 3072
s_lshr_b32 s5, {hi}, 2
s_lshl_b32 s5, s5, 7
s_add_u32 s4, s4, s5
v_lshrrev_b32 v50, 3, {LANE}
v_mul_u32_u24 v50, 3072, v50
v_and_b32 v51, 7, {LANE}
v_lshl_add_u32 v50, v51, 4, v50
s_mul_i32 s5, {S_WAVE}, 10240
s_add_u32 s5, s5, {PW1_LDS}
""")
    for i in range(10):
        p(f"s_mov_b32 m0, s5\ns_add_u32 s5, s5, 1024")
        p(f"buffer_load_dwordx4 v50, {SRD_W}, s4 offen lds", tag='pk1')
        p(f"s_add_u32 s4, s4, {8*3072}")


def pack1_compute(p, hi, stflag):
    p(f"""
s_and_b32 s4, {S_WAVE}, 1
s_lshr_b32 s5, {S_WAVE}, 1
s_bfe_u32 s6, {hi}, 0x10001
s_and_b32 s7, {hi}, 1
s_lshr_b32 s8, {hi}, 2
v_bfe_u32 v2, {LANE}, 4, 1
s_lshl_b32 s9, s4, 1
v_add_u32 v2, s9, v2
v_lshrrev_b32 v3, 5, {LANE}
v_bfe_u32 v4, {LANE}, 2, 2
v_lshl_add_u32 v4, v3, 2, v4
v_lshlrev_b32 v4, 7, v4
v_lshl_add_u32 v4, v2, 5, v4
v_and_b32 v5, 3, {LANE}
v_lshl_add_u32 v4, v5, 3, v4
s_mul_i32 s9, s5, {10*16*128}
s_add_u32 s9, s9, {PW1_LDS}
v_add_u32 v4, s9, v4
s_lshl_b32 s9, s8, 2
v_add_u32 v5, s9, v2
v_mul_u32_u24 v6, 43, v5
v_lshrrev_b32 v6, 8, v6
v_mul_u32_u24 v7, 6, v6
v_sub_u32 v7, v5, v7
v_cmp_lt_u32 vcc, 2, v7
v_lshlrev_b32 v6, 2, v6
s_lshl_b32 s9, s6, 1
v_add_u32 v6, s9, v6
v_mul_u32_u24 v6, 60, v6
v_add_u32 v6, v6, v7
v_cndmask_b32 v7, 0, 57, vcc
s_mul_i32 s9, s5, 30
v_add3_u32 v6, v6, v7, s9
v_lshlrev_b32 v6, 10, v6
v_and_b32 v7, 15, {LANE}
s_lshl_b32 s9, s6, 3
v_xor_b32 v8, s9, v7
v_lshl_add_u32 v8, v3, 5, v8
s_lshl_b32 s9, s7, 4
v_add_u32 v8, s9, v8
v_lshl_add_u32 v6, v8, 4, v6
v_add_u32 v6, {WS_W1P}, v6
v_mov_b32 v8, 0
v_mov_b32 v9, 0
s_mov_b32 s10, 0x3f803f80
""")
    p.wait_vm('pk1')
    p("s_barrier")
    for i in range(10):
        p(f"ds_read_b64_tr_b16 {v(12+4*i, 2)}, v4 offset:{i*2048}")
        p(f"ds_read_b64_tr_b16 {v(14+4*i, 2)}, v4 offset:{i*2048+1024}")
    p("s_mov_b32 s9, 0")
    for i in range(10):
        p(f"buffer_store_dwordx4 {v(12+4*i, 4)}, v6, {SRD_WS}, s9 offen {stflag}", tag='w1p')
        p("s_add_u32 s9, s9, 3072")
        for k in range(4):
            p(f"v_dot2c_f32_bf16 {v(8+(k&1))}, s10, {v(12+4*i+k)}")
    p(f"""
v_add_f32 v8, v8, v9
v_lshl_add_u32 v10, v2, 4, v7
v_lshlrev_b32 v10, 2, v10
s_lshl_b32 s9, s5, 1
s_add_u32 s9, s9, {PCS_LDS//256}
v_add_u32 v11, s9, v3
v_lshl_add_u32 v11, v11, 8, v10
ds_write_b32 v11, v8
v_lshlrev_b32 v10, 2, {LANE}
v_add_u32 v11, {PCS_LDS}, v10
s_waitcnt lgkmcnt(0)
s_barrier
ds_read2st64_b32 v[8:9], v11 offset0:0 offset1:1
ds_read2st64_b32 v[4:5], v11 offset0:2 offset1:3
s_lshl_b32 s9, s6, 1
s_add_u32 s9, s9, s7
s_mul_i32 s9, s9, 6144
s_lshl_b32 s11, s8, 8
s_add_u32 s9, s9, s11
s_add_u32 s9, s9, {WS_CS}
v_add_f32 v8, v8, v9
v_add_f32 v4, v4, v5
v_add_f32 v8, v8, v4
""")
    p(f"buffer_store_dword v8, v10, {SRD_WS}, s9 offen {stflag}", tag='w1p')


def pack2_loads(p, hi):
    p(f"""
s_mov_b32 s56, s40
s_mov_b32 s57, s41
s_mul_i32 s12, {hi}, 205
s_lshr_b32 s12, s12, 10
s_mul_i32 s13, s12, 5
s_sub_u32 s13, {hi}, s13
s_mul_i32 s4, s12, 96
s_mul_i32 s5, {S_WAVE}, 24
s_add_u32 s4, s4, s5
s_mul_i32 s4, s4, 1280
s_lshl_b32 s5, s13, 8
s_add_u32 s4, s4, s5
v_lshrrev_b32 v52, 4, {LANE}
v_mul_u32_u24 v52, 1280, v52
v_and_b32 v53, 15, {LANE}
v_lshl_add_u32 v52, v53, 4, v52
s_mul_i32 s5, {S_WAVE}, 6144
s_add_u32 s5, s5, {PW2_LDS}
""")
    for i in range(6):
        p(f"s_mov_b32 m0, s5\ns_add_u32 s5, s5, 1024")
        p(f"buffer_load_dwordx4 v52, {SRD_W}, s4 offen lds", tag='pk2')
        p(f"s_add_u32 s4, s4, {4*1280}")


def g_granule_rows(g12):
    w, ty = divmod(g12, 3)
    nh, kh = w & 1, w >> 1
    r0 = 48*nh + 8*kh + (4*ty if ty < 2 else 32)
    return r0, r0 + (16 if ty < 2 else 4)


def pack2_compute(p, hi, stflag):
    p(f"""
v_lshrrev_b32 v2, 4, {LANE}
v_lshlrev_b32 v2, 3, v2
v_bfe_u32 v3, {LANE}, 2, 2
v_lshlrev_b32 v3, 8, v3
v_and_b32 v4, 3, {LANE}
v_lshl_add_u32 v3, v4, 3, v3
s_lshl_b32 s4, {S_WAVE}, 6
s_add_u32 s4, s4, {PW2_LDS}
v_add_u32 v3, s4, v3
v_lshlrev_b32 v10, 4, {LANE}
""")
    for s3 in range(3):
        for k in range(2):
            c = sum(g_granule_rows(4*s3+g)[k] << (8*g) for g in range(4))
            r = 4 + 2*s3 + k
            p(f"s_mov_b32 s4, {hex(c)}\nv_bfe_u32 {v(r)}, s4, v2, 8\nv_lshl_add_u32 {v(r)}, {v(r)}, 8, v3")
    p.wait_vm('pk2')
    p("s_barrier")
    for e in range(2):
        for s3 in range(3):
            r = 12 + 4*(3*e+s3)
            p(f"ds_read_b64_tr_b16 {v(r, 2)}, {v(4+2*s3)} offset:{e*32}")
            p(f"ds_read_b64_tr_b16 {v(r+2, 2)}, {v(5+2*s3)} offset:{e*32}")
    for e in range(2):
        p(f"""
s_lshl_b32 s4, s13, 3
s_lshl_b32 s5, {S_WAVE}, 1
s_add_u32 s4, s4, s5
s_add_u32 s4, s4, {e}
s_mul_i32 s5, s4, 205
s_lshr_b32 s5, s5, 10
s_mul_i32 s6, s5, 5
s_sub_u32 s4, s4, s6
s_lshl_b32 s5, s5, 2
s_lshr_b32 s6, s12, 2
s_add_u32 s5, s5, s6
s_mul_i32 s5, s5, 60
s_and_b32 s6, s12, 3
s_mul_i32 s6, s6, 15
s_add_u32 s5, s5, s6
s_add_u32 s5, s5, s4
s_lshl_b32 s5, s5, 10
s_add_u32 s5, s5, {WS_W2P}
""")
        for s3 in range(3):
            p(f"buffer_store_dwordx4 {v(12+4*(3*e+s3), 4)}, v10, {SRD_WS}, s5 offen {stflag}", tag='w2p')
            p("s_add_u32 s5, s5, 5120")


KC_LDS, KC_CH, KC_COPY = 0, 16640, 4160
UC_LDS, UC_CH, UC_COPY, UC_PLANE = 66560, 10240, 5120, 1280
XC_LDS, XC_CH = 107520, 4096
TB_LDS, TB_W = 123904, 3072
CONV_LDS_END = TB_LDS + 4 * TB_W
STG_ROW = 800
LOG2E = 1.4426950408889634
INV2PI = 0.15915494309189535


class ConvRegs:
    def __init__(self):
        A = Alloc(2)
        self.t = A(6)
        self.x = A(16, 4)
        self.st = A(16, 4)
        self.dfrag = A(4, 4)
        self.aA = A()
        self.aB = A()
        self.aXr = A()
        self.aUw = A()
        self.aFix = A()
        self.aHw = A()
        self.aHr = A()
        self.aHg = A()
        self.aSt = A()
        self.base = A.n


def cmul(p, dsts, xs, es, tmps):
    for d, x, e, t in zip(dsts, xs, es, tmps):
        p(f"v_pk_mul_f32 {v(t, 2)}, {v(x, 2)}, {v(e, 2)} op_sel:[0,0] op_sel_hi:[0,1]")
    for d, x, e, t in zip(dsts, xs, es, tmps):
        p(f"v_pk_fma_f32 {v(d, 2)}, {v(x, 2)}, {v(e, 2)}, {v(t, 2)} op_sel:[1,1,0] op_sel_hi:[1,0,1] neg_lo:[0,1,0]")


def conv_loads(p, R, sq):
    A = Alloc(R.base)
    R.pd = A(6)
    R.ps = A(6)
    R.ldt = A()
    R.dsk = A()
    R.kbase = A.n
    t = R.t
    p(f"""
s_lshl_b32 s4, {sq}, 2
s_add_u32 s4, s4, {S_WAVE}
s_mul_i32 s5, s4, 384
v_lshl_add_u32 {v(t)}, {LANE}, 2, s5
v_lshl_add_u32 {v(t+1)}, {LANE}, 1, s5
s_lshl_b32 s4, s4, 1
v_mov_b32 {v(t+2)}, s4
global_load_ushort {v(R.ldt)}, {v(t+2)}, {P_LDT}
""")
    for i, P in enumerate((P_ARE, P_AIM, P_BRE, P_BIM, P_CRE, P_CIM)):
        p(f"global_load_dword {v(R.pd+i)}, {v(t)}, {P}")
        p(f"global_load_ushort {v(R.ps+i)}, {v(t+1)}, {P} offset:256")
    p(f"""
global_load_ushort {v(R.dsk)}, {v(t+2)}, {P_DSK}
s_mul_i32 s5, {S_WAVE}, {8*1280}
s_lshl_b32 s6, {sq}, 3
s_add_u32 s5, s5, s6
s_add_u32 s5, s5, {2*1280}
v_mul_u32_u24 {v(t+3)}, {32*1280}, {LANE}
v_add_u32 {v(t+3)}, s5, {v(t+3)}
v_add_u32 {v(t+4)}, {4*1280}, {v(t+3)}
""")
    for i in range(8):
        p(f"global_load_dwordx2 {v(R.x+2*i, 2)}, {v(t+3+i//4)}, {P_X} offset:{(i%4-2)*1280}")


def conv_addresses(p, R, sq):
    t = R.t
    p(f"""
v_and_b32 {v(t)}, 15, {LANE}
v_lshrrev_b32 {v(t+1)}, 4, {LANE}
v_lshrrev_b32 {v(t+2)}, 2, {v(t)}
v_and_b32 {v(t+3)}, 3, {LANE}
s_mul_i32 s4, {S_WAVE}, {KC_CH}
v_sub_u32 {v(t+4)}, 3, {v(t+3)}
v_mul_u32_u24 {v(t+4)}, {KC_COPY}, {v(t+4)}
v_sub_u32 {v(t+5)}, {v(t+1)}, {v(t+2)}
v_add_u32 {v(t+5)}, 3, {v(t+5)}
v_lshl_add_u32 {v(t+4)}, {v(t+5)}, 4, {v(t+4)}
v_add_u32 {v(R.aA)}, s4, {v(t+4)}
s_mul_i32 s5, {S_WAVE}, {UC_CH}
s_add_u32 s5, s5, {UC_LDS}
v_mul_u32_u24 {v(t+4)}, {UC_PLANE}, {v(t+1)}
v_lshl_add_u32 {v(t+4)}, {v(t)}, 4, {v(t+4)}
v_add_u32 {v(R.aB)}, s5, {v(t+4)}
s_lshl_b32 s5, {S_WAVE}, 12
s_add_u32 s5, s5, {XC_LDS}
v_lshlrev_b32 {v(t+4)}, 10, {v(t+1)}
v_lshl_add_u32 {v(t+4)}, {v(t)}, 4, {v(t+4)}
v_add_u32 {v(R.aXr)}, s5, {v(t+4)}
s_mul_i32 s5, {S_WAVE}, {UC_PLANE}
s_add_u32 s5, s5, {UC_LDS + 256}
v_lshl_add_u32 {v(R.aUw)}, {LANE}, 4, s5
s_add_u32 s6, s5, {UC_PLANE}
s_cmp_eq_u32 {S_WAVE}, 3
s_cselect_b32 s6, {UC_LDS + 256 + 16}, s6
v_lshl_add_u32 {v(R.aFix)}, {LANE}, 4, s6
s_lshl_b32 s5, {S_WAVE}, 6
s_add_u32 s5, s5, s4
v_mul_u32_u24 {v(t+4)}, 528, {v(t+1)}
v_lshl_add_u32 {v(t+4)}, {v(t)}, 3, {v(t+4)}
v_add_u32 {v(R.aHw)}, s5, {v(t+4)}
v_mul_u32_u24 {v(t+4)}, {KC_CH + 64}, {v(t+2)}
v_mul_u32_u24 {v(t+5)}, 528, {v(t+3)}
v_add_u32 {v(t+4)}, {v(t+4)}, {v(t+5)}
v_lshl_add_u32 {v(t+4)}, {v(t+1)}, 3, {v(t+4)}
s_lshl_b32 s5, {S_WAVE}, 7
v_add_u32 {v(R.aHr)}, s5, {v(t+4)}
s_mul_i32 s5, {S_WAVE}, {16*40960}
s_lshl_b32 s6, {sq}, 8
s_add_u32 s5, s5, s6
s_add_u32 s5, s5, {WS_H}
v_mul_u32_u24 {v(t+4)}, 40960, {v(t+1)}
v_lshl_add_u32 {v(t+4)}, {v(t)}, 4, {v(t+4)}
v_add_u32 {v(R.aHg)}, s5, {v(t+4)}
s_lshl_b32 s5, {S_WAVE}, 10
s_add_u32 s5, s5, {WS_ST1}
v_lshl_add_u32 {v(R.aSt)}, {LANE}, 4, s5
""")
    z = R.st
    for k in range(4):
        p(f"v_mov_b32 {v(z+k)}, 0")
    p(f"ds_write_b128 {v(R.aB)}, {v(z, 4)}\nds_write_b128 {v(R.aB)}, {v(z, 4)} offset:{UC_COPY}")


def kgen(p, R):
    A = Alloc(R.kbase)
    aW64, aW32, aFr, aT0, aT1, aT2, aG3, aK = [A() for _ in range(8)]
    aQ = A()
    pk = [A(4, 2), A(4, 2)]
    scratch = A(0, 4)
    E1, E16, E256, Q0, Q1, TM = [[A(2) for _ in range(3)] for _ in range(6)]
    P = {k: [A(2) for _ in range(3)] for k in range(2, 16, 2)}
    acc = A(12, 4)
    fB, fA = 0, 48
    t = R.t
    p(f"""
s_mul_i32 s4, {S_WAVE}, {KC_CH}
v_lshl_add_u32 {v(aW64)}, {LANE}, 3, s4
v_lshl_add_u32 {v(aK)}, {LANE}, 4, s4
s_add_u32 s5, s4, 512
v_lshl_add_u32 {v(aW32)}, {LANE}, 2, s5
v_and_b32 {v(t)}, 15, {LANE}
v_lshrrev_b32 {v(t+1)}, 4, {LANE}
v_mul_u32_u24 {v(t+2)}, {STG_ROW}, {v(t)}
v_lshl_add_u32 {v(t+2)}, {v(t+1)}, 4, {v(t+2)}
v_add_u32 {v(aFr)}, s4, {v(t+2)}
s_mul_i32 s5, {S_WAVE}, {TB_W}
s_add_u32 s5, s5, {TB_LDS}
v_lshlrev_b32 {v(t+2)}, 6, {v(t)}
v_lshl_add_u32 {v(t+2)}, {v(t+1)}, 4, {v(t+2)}
v_add_u32 {v(aT0)}, s5, {v(t+2)}
v_lshlrev_b32 {v(t+2)}, 5, {v(t)}
v_lshl_add_u32 {v(t+2)}, {v(t+1)}, 4, {v(t+2)}
v_lshlrev_b32 {v(t+3)}, 8, {v(t+1)}
v_lshl_add_u32 {v(t+4)}, {v(t)}, 4, {v(t+3)}
v_cmp_gt_u32 vcc, 32, {LANE}
v_cndmask_b32 {v(t+2)}, {v(t+4)}, {v(t+2)}, vcc
v_add_u32 {v(aT1)}, s5, {v(t+2)}
v_lshl_add_u32 {v(t+3)}, {v(t)}, 3, {v(t+3)}
v_add_u32 {v(aT2)}, s5, {v(t+3)}
v_sub_u32 {v(t+2)}, 63, {LANE}
v_lshl_add_u32 {v(aQ)}, {v(t+2)}, 2, s5
v_lshlrev_b32 {v(t+3)}, 5, {v(t+2)}
v_lshlrev_b32 {v(t+4)}, 4, {v(t+2)}
v_add_u32 {v(t+4)}, 512, {v(t+4)}
v_cndmask_b32 {v(t+3)}, {v(t+3)}, {v(t+4)}, vcc
v_add_u32 {v(aG3)}, s5, {v(t+3)}
""")
    dt = R.ldt
    p(f"""
v_lshlrev_b32 {v(dt)}, 16, {v(dt)}
v_mul_f32 {v(dt)}, {f32(LOG2E)}, {v(dt)}
v_exp_f32 {v(dt)}, {v(dt)}
v_cvt_pk_bf16_f32 {v(dt)}, {v(dt)}, {v(dt)}
v_and_b32 {v(dt)}, 0xffff0000, {v(dt)}
""")

    def unpack(dst3, i):
        p(f"v_lshlrev_b32 {v(dst3[0])}, 16, {v(R.pd+i)}")
        p(f"v_and_b32 {v(dst3[1])}, 0xffff0000, {v(R.pd+i)}")
        p(f"v_lshlrev_b32 {v(dst3[2])}, 16, {v(R.ps+i)}")
    Z = P[2]
    unpack(Z, 0)
    unpack([r+1 for r in Z], 1)
    for r in Z:
        p(f"v_mul_f32 {v(r)}, {v(dt)}, {v(r)}\nv_mul_f32 {v(r+1)}, {v(dt)}, {v(r+1)}")
    for r in Z:
        p(f"v_mul_f32 {v(r)}, {f32(LOG2E)}, {v(r)}\nv_mul_f32 {v(r+1)}, {f32(INV2PI)}, {v(r+1)}")
    for E, l in ((E16, 16.0), (E1, 1.0), (E256, 256.0)):
        M = P[4]
        for n in range(3):
            if l == 1.0:
                p(f"v_exp_f32 {v(M[n])}, {v(Z[n])}\nv_fract_f32 {v(M[n]+1)}, {v(Z[n]+1)}")
            else:
                p(f"v_mul_f32 {v(M[n])}, {f32(l)}, {v(Z[n])}\nv_mul_f32 {v(M[n]+1)}, {f32(l)}, {v(Z[n]+1)}")
        if l != 1.0:
            for n in range(3):
                p(f"v_exp_f32 {v(M[n])}, {v(M[n])}\nv_fract_f32 {v(M[n]+1)}, {v(M[n]+1)}")
        for n in range(3):
            p(f"v_cos_f32 {v(E[n])}, {v(M[n]+1)}\nv_sin_f32 {v(E[n]+1)}, {v(M[n]+1)}")
        for n in range(3):
            p(f"v_pk_mul_f32 {v(E[n], 2)}, {v(E[n], 2)}, {v(M[n], 2)} op_sel:[0,0] op_sel_hi:[1,0]")
    Bc, Cc = P[6], P[8]
    unpack(Bc, 2)
    unpack([r+1 for r in Bc], 3)
    unpack(Cc, 4)
    unpack([r+1 for r in Cc], 5)
    for r in Bc:
        p(f"v_mul_f32 {v(r)}, {v(dt)}, {v(r)}\nv_mul_f32 {v(r+1)}, {v(dt)}, {v(r+1)}")
    cmul(p, Q0, Cc, Bc, TM)

    cnt = [0]

    def put_row(row, src, neg=False):
        k = pk[cnt[0] & 1]
        cnt[0] += 1
        for n in range(3):
            p(f"v_cvt_pk_bf16_f32 {v(k+n)}, {v(src[n])}, {'-' if neg else ''}{v(src[n]+1)}")
        p(f"ds_write_b64 {v(aW64)}, {v(k, 2)} offset:{row*STG_ROW}")
        p(f"ds_write_b32 {v(aW32)}, {v(k+2)} offset:{row*STG_ROW}")

    def read_frags(dst):
        for s in range(12):
            p(f"ds_read_b128 {a(dst+4*s, 4)}, {v(aFr)} offset:{s*64}")

    def mfmas(T):
        for s in range(12):
            c = '0' if s == 0 else v(acc+4*T, 4)
            p(f"v_mfma_f32_16x16x32_bf16 {v(acc+4*T, 4)}, {a(fA+4*s, 4)}, {a(fB+4*s, 4)}, {c}")

    cur, nxt = Q0, Q1
    put_row(0, cur, True)
    for c in range(1, 16):
        cmul(p, nxt, cur, E16, TM)
        put_row(c, nxt, True)
        cur, nxt = nxt, cur
    read_frags(fB)
    k = pk[cnt[0] & 1]
    cnt[0] += 1
    p(f"v_mov_b32 {v(k)}, 0x3f80\nv_mov_b32 {v(k+1)}, 0x3f80")
    p(f"ds_write_b64 {v(aW64)}, {v(k, 2)}\nds_write_b32 {v(aW32)}, {v(k)}")
    put_row(1, E1)
    cur = E1
    for c in range(2, 16):
        d = P[c] if c % 2 == 0 else Q0
        cmul(p, d, cur, E1, TM)
        put_row(c, d)
        cur = d
    read_frags(fA)
    G2, G3 = E1, E16
    cmul(p, G2, E256, E256, TM)
    cmul(p, G3, G2, E256, TM)
    put_row(0, E256)
    for e in range(1, 8):
        cmul(p, Q0, E256, P[2*e], TM)
        put_row(e, Q0)
        if e == 1:
            mfmas(0)
    for base, G in ((8, G2), (12, G3)):
        put_row(base, G)
        for e in range(1, 4):
            cmul(p, Q0, G, P[4*e], TM)
            put_row(base+e, Q0)
    read_frags(fA)
    cur, nxt = G3, G2
    for kk in range(4):
        cmul(p, nxt, cur, E256, TM)
        put_row(2*kk, nxt)
        cmul(p, Q0, nxt, P[8], TM)
        put_row(2*kk+1, Q0)
        cur, nxt = nxt, cur
        if kk == 0:
            mfmas(1)
    cmul(p, nxt, cur, E256, TM)
    put_row(8, nxt)
    read_frags(fA)
    p(f"ds_write_b128 {v(aT0)}, {v(acc, 4)}")
    p(f"ds_write_b128 {v(aT1)}, {v(acc+4, 4)} offset:1024")
    mfmas(2)
    p(f"ds_write_b64 {v(aT2)}, {v(acc+8, 2)} offset:2048")
    p(f"ds_write_b64 {v(aT2)}, {v(acc+10, 2)} offset:{2048+128}")

    g = scratch
    w = scratch + 16
    p(f"""
v_lshlrev_b32 {v(t+2)}, 2, {LANE}
v_sub_u32 {v(t+2)}, {v(aQ)}, {v(t+2)}
ds_read_b128 {v(g+8, 4)}, {v(aG3)}
ds_read_b128 {v(g+12, 4)}, {v(aG3)} offset:16
ds_read_b64 {v(g+4, 2)}, {v(t+2)} offset:{384*4 + 63*4}
ds_read_b32 {v(g+6)}, {v(t+2)} offset:{384*4 + 63*4 + 8}
ds_read_b32 {v(g+2)}, {v(aQ)} offset:{512*4}
ds_read_b32 {v(g+3)}, {v(aQ)} offset:{512*4 + 4}
ds_read_b32 {v(g)}, {v(aQ)} offset:{576*4}
ds_read_b32 {v(g+1)}, {v(aQ)} offset:{576*4 + 4}
v_and_b32 {v(t+3)}, 3, {LANE}
v_bfe_u32 {v(t+4)}, {LANE}, 2, 2
v_mul_u32_u24 {v(t+4)}, {KC_COPY}, {v(t+4)}
v_lshl_add_u32 {v(t+4)}, {v(t+3)}, 4, {v(t+4)}
v_add_u32 {v(t+4)}, s4, {v(t+4)}
ds_write_b128 {v(t+4)}, {v(R.st, 4)} offset:4096
v_and_b32 {v(t+3)}, 1, {LANE}
v_cmp_eq_u32 vcc, 0, {v(t+3)}
""")
    cv = lambda d, lo, hi: p(f"v_cvt_pk_bf16_f32 {v(d)}, {v(lo)}, {v(hi)}")
    k = g + 8
    d = w + 36
    for j, (lo, hi) in enumerate(((7, 6), (5, 4), (3, 2), (1, 0))):
        cv(d+j, k+lo, k+hi)
    p("s_mov_b32 exec_hi, 0")
    for j, (lo, hi) in enumerate(((4, 3), (2, 2), (2, 1), (0, 0))):
        cv(d+j, k+lo, k+hi)
    p("s_mov_b32 exec_hi, -1")
    p(f"ds_write_b128 {v(aK)}, {v(d, 4)} offset:3072")
    d = w + 24
    for j, (lo, hi) in enumerate(((6, 6), (5, 5), (5, 4), (4, 4))):
        cv(d+j, g+lo, g+hi)
    p(f"ds_write_b128 {v(aK)}, {v(d, 4)} offset:2048")
    for q in (1, 0):
        d = w + 12*q
        ra, rb = g + 2*q, g + 2*q + 1
        p(f"v_cndmask_b32 {v(t+3)}, {v(ra)}, {v(rb)}, vcc")
        cv(d, rb, rb)
        cv(d+2, ra, ra)
        cv(d+3, ra, ra)
        cv(d+1, rb, t+3)
        p(f"ds_write_b128 {v(aK)}, {v(d, 4)} offset:{1024*q}")
    for q in (3, 2, 1, 0):
        d = w + 12*q
        p(f"v_add_u32 {v(t+q)}, {1024*q}, {v(aK)}")
        p(f"ds_read_b64 {v(d+4, 2)}, {v(aK)} offset:{1024*q + 16}")
        for j in range(3):
            p(f"ds_read2_b32 {v(d+6+2*j, 2)}, {v(t+q)} offset0:{1+2*j} offset1:{2+2*j}")
    for q in (3, 2, 1, 0):
        d = w + 12*q
        p(f"ds_write_b128 {v(aK)}, {v(d+2, 4)} offset:{1024*q + 2*KC_COPY}")
        p(f"ds_write_b128 {v(aK)}, {v(d+6, 4)} offset:{1024*q + KC_COPY}")
        p(f"ds_write_b128 {v(aK)}, {v(d+8, 4)} offset:{1024*q + 3*KC_COPY}")
    p(f"""
v_lshlrev_b32 {v(R.dsk)}, 16, {v(R.dsk)}
v_and_b32 {v(t)}, 15, {LANE}
v_lshrrev_b32 {v(t+1)}, 4, {LANE}
v_lshlrev_b32 {v(t+1)}, 2, {v(t+1)}
v_sub_u32 {v(t)}, {v(t)}, {v(t+1)}
""")
    for j in range(4):
        p(f"v_cmp_eq_u32 s[{6+2*j}:{7+2*j}], {j}, {v(t)}")
    for j in range(4):
        p(f"v_cndmask_b32 {v(R.dfrag+j)}, 0, {v(R.dsk)}, s[{6+2*j}:{7+2*j}]")


def conv_xprep(p, R):
    A = Alloc(R.base)
    R.xf = A(32, 4)
    R.pk = A(32, 4)
    p("s_mov_b32 s4, 0x05040100\ns_mov_b32 s5, 0x07060302")
    p(f"s_lshl_b32 s6, {S_WAVE}, 10\ns_add_u32 s6, s6, {XC_LDS}\nv_lshl_add_u32 {v(R.t)}, {LANE}, 4, s6")
    for c in range(4):
        for j in range(4):
            lo, hi = R.x + 4*j + c//2, R.x + 4*j + 2 + c//2
            p(f"v_perm_b32 {v(R.pk+4*c+j)}, {v(hi)}, {v(lo)}, s{4 + (c & 1)}")
        p(f"ds_write_b128 {v(R.t)}, {v(R.pk+4*c, 4)} offset:{c*XC_CH}")
    for i in range(8):
        for hpair in range(2):
            p(f"v_lshlrev_b32 {v(R.xf+4*i+2*hpair)}, 16, {v(R.x+2*i+hpair)}")
            p(f"v_and_b32 {v(R.xf+4*i+2*hpair+1)}, 0xffff0000, {v(R.x+2*i+hpair)}")


def conv_stat_loads(p, R, ldflag):
    for k in range(4):
        p(f"s_mov_b32 s4, {k*4096}\nbuffer_load_dwordx4 {v(R.st+4*k, 4)}, {v(R.aSt)}, {SRD_WS}, s4 offen {ldflag}")


def conv_normalize(p, R):
    for i in range(8):
        for hpair in range(2):
            r = R.xf + 4*i + 2*hpair
            p(f"v_pk_fma_f32 {v(r, 2)}, {v(r, 2)}, {v(R.st+2*i, 2)}, {v(R.st+2*i, 2)} op_sel:[0,0,1] op_sel_hi:[1,0,1]")
    u = lambda i, c: v(R.xf + 4*i + c)
    for c in range(4):
        d = R.pk + 8*c
        for j in range(4):
            p(f"v_cvt_pk_bf16_f32 {v(d+j)}, {u(2*j, c)}, {u(2*j+1, c)}")
        p(f"ds_write_b128 {v(R.aUw)}, {v(d, 4)} offset:{c*UC_CH + UC_COPY}")
        for j in range(4):
            p(f"v_cvt_pk_bf16_f32 {v(d+4+j)}, {'0' if j == 0 else u(2*j-1, c)}, {u(2*j, c)}")
        p(f"ds_write_b128 {v(R.aUw)}, {v(d+4, 4)} offset:{c*UC_CH}")
    p("s_waitcnt lgkmcnt(0)\ns_barrier")
    for c in range(4):
        p(f"ds_write_b16_d16_hi {v(R.aFix)}, {v(R.pk+8*c+3)} offset:{c*UC_CH}")


def conv_main(p, R, stflag, extra=None):
    A = Alloc(R.base)
    acc = A(32, 4)
    xg = A(16, 4)
    A.n = max(A.n, R.pk + 32)
    buf = [A(48, 4), A(48, 4)]
    ac = lambda par, c: acc + 16*par + 4*c
    fa = lambda b, e: buf[b] + 4*e
    fb = lambda b, par, f: buf[b] + 16 + 16*par + 4*f

    def reads(dl, which='AB'):
        b = dl & 1
        L = []
        order = [('A', 0, 0), ('B', 1, 0), ('B', 0, 0), ('B', 1, 1), ('B', 0, 1), ('A', 1, 0), ('B', 1, 2), ('B', 0, 2),
                 ('A', 2, 0), ('B', 1, 3), ('B', 0, 3), ('A', 3, 0)]
        for kind, x, y in order:
            if kind not in which:
                continue
            if kind == 'A':
                L.append(Ins(f"ds_read_b128 {v(fa(b, x), 4)}, {v(R.aA)} offset:{(252 - 4*(dl + 16*x))*16}"))
            else:
                L.append(Ins(f"ds_read_b128 {v(fb(b, x, y), 4)}, {v(R.aB)} offset:{x*UC_COPY + (16 + 16*y - dl)*16}"))
        return L

    def mf(dl):
        b = dl & 1
        L = []
        for e, f in ((0, 0), (0, 1), (1, 0), (1, 1), (0, 2), (2, 0), (1, 2), (2, 1), (0, 3), (3, 0)):
            for par in (1, 0):
                d = v(ac(par, e+f), 4)
                L.append(Ins(f"v_mfma_f32_16x16x32_bf16 {d}, {v(fa(b, e), 4)}, {v(fb(b, par, f), 4)}, {d}"))
        if dl == 0:
            for f in range(4):
                for par in (1, 0):
                    d = v(ac(par, f), 4)
                    L.append(Ins(f"v_mfma_f32_16x16x32_bf16 {d}, {v(R.dfrag, 4)}, {v(fb(b, par, f), 4)}, {d}"))
        return L

    for c in range(4):
        p(f"ds_read_b128 {v(xg+4*c, 4)}, {v(R.aXr)} offset:{c*256}")
    p.add(reads(0, 'A'))
    p("s_waitcnt lgkmcnt(0)\ns_barrier")
    p.add(reads(0, 'B'))
    for c in range(4):
        for r in range(4):
            p(f"v_lshlrev_b32 {v(ac(0, c)+r)}, 16, {v(xg+4*c+r)}")
            p(f"v_and_b32 {v(ac(1, c)+r)}, 0xffff0000, {v(xg+4*c+r)}")
    extra = list(extra or [])
    for dl in range(16):
        fixed = {i: [it] for i, it in enumerate(reads(dl+1) if dl < 15 else [])}
        for g in (12, 14, 16, 18):
            if extra:
                fixed[g] = extra.pop(0)
        p.add(pack_gaps(mf(dl), fixed, [], 2))
    for grp in extra:
        p.add(grp)
    o = buf[0]
    for c in range(4):
        for par in (1, 0):
            d = o + 4*c + 2*par
            p(f"v_cvt_pk_bf16_f32 {v(d)}, {v(ac(par, c))}, {v(ac(par, c)+1)}")
            p(f"v_cvt_pk_bf16_f32 {v(d+1)}, {v(ac(par, c)+2)}, {v(ac(par, c)+3)}")
            p(f"ds_write_b64 {v(R.aHw)}, {v(d, 2)} offset:{par*2112 + c*128}")
    p("s_waitcnt lgkmcnt(0)\ns_barrier")
    o = buf[1]
    for it in range(4):
        for par in range(2):
            p(f"ds_read_b64_tr_b16 {v(o+4*it+2*par, 2)}, {v(R.aHr)} offset:{par*2112 + it*32}")
    for it in range(4):
        p(f"s_mov_b32 s4, {it*4*40960}")
        p(f"buffer_store_dwordx4 {v(o+4*it, 4)}, {v(R.aHg)}, {SRD_WS}, s4 offen {stflag}", tag='hst')


S_RB, S_CB, S_SG, S_DT = 's64', 's65', 's66', 's67'


def ffn_coords(p):
    p(f"""
s_and_b32 s4, s2, 7
s_lshr_b32 s5, s2, 3
s_and_b32 {S_SG}, s4, 1
s_and_b32 {S_DT}, s5, 7
s_lshr_b32 s4, s4, 1
s_lshl_b32 s4, s4, 2
s_lshr_b32 s5, s5, 3
s_add_u32 {S_RB}, s4, s5
s_lshl_b32 s4, {S_SG}, 3
s_add_u32 {S_CB}, s4, {S_DT}
""")


H_SLOT = 40960
EX_LDS = 3 * H_SLOT
S2_LDS = EX_LDS + 24576
G1_LDS_END = S2_LDS + 256


def stats2_loads(p, r0, ldflag):
    t = r0 + 12
    p(f"""
s_lshl_b32 s4, {S_RB}, 2
s_lshr_b32 s5, {S_CB}, 2
s_add_u32 s4, s4, s5
s_mul_i32 s4, s4, 40960
s_and_b32 s5, {S_CB}, 3
s_lshl_b32 s5, s5, 6
s_add_u32 s4, s4, s5
s_mul_i32 s5, {S_WAVE}, 10240
s_add_u32 s4, s4, s5
s_add_u32 s4, s4, {WS_H}
v_lshrrev_b32 {v(t)}, 2, {LANE}
v_lshlrev_b32 {v(t)}, 8, {v(t)}
v_and_b32 {v(t+1)}, 3, {LANE}
v_lshl_add_u32 {v(t)}, {v(t+1)}, 4, {v(t)}
v_add_u32 {v(t)}, s4, {v(t)}
v_add_u32 {v(t+1)}, 4096, {v(t)}
v_add_u32 {v(t+2)}, 8192, {v(t)}
v_mov_b32 {v(t+3)}, {OOB}
v_cmp_gt_u32 vcc, 32, {LANE}
v_cndmask_b32 {v(t+2)}, {v(t+3)}, {v(t+2)}, vcc
""")
    for k in range(3):
        p(f"buffer_load_dwordx4 {v(r0+4*k, 4)}, {v(t+k)}, {SRD_WS}, 0 offen {ldflag}")


def stats2_partial(p, r0):
    t = r0 + 12
    p("s_mov_b32 s4, 0x3f803f80")
    for k in range(4):
        p(f"v_mov_b32 {v(t+k)}, 0")
    for k in range(3):
        for j in range(4):
            e = j >> 1
            p(f"v_dot2c_f32_bf16 {v(t+2*e)}, s4, {v(r0+4*k+j)}")
            p(f"v_dot2c_f32_bf16 {v(t+2*e+1)}, {v(r0+4*k+j)}, {v(r0+4*k+j)}")
    p(f"""
v_permlane32_swap_b32 {v(t)}, {v(t+2)}
v_permlane32_swap_b32 {v(t+1)}, {v(t+3)}
v_add_f32 {v(t)}, {v(t)}, {v(t+2)}
v_add_f32 {v(t+1)}, {v(t+1)}, {v(t+3)}
v_and_b32 {v(t+4)}, 3, {LANE}
v_lshrrev_b32 {v(t+5)}, 4, {LANE}
v_permlane16_swap_b32 {v(t)}, {v(t+1)}
v_lshl_add_u32 {v(t+4)}, {v(t+4)}, 2, {v(t+5)}
v_add_f32 {v(t)}, {v(t)}, {v(t+1)}
s_lshl_b32 s4, {S_WAVE}, 2
s_add_u32 s4, s4, {S2_LDS}
v_add_f32_dpp {v(t)}, {v(t)}, {v(t)} row_ror:4 row_mask:0xf bank_mask:0xf
v_lshl_add_u32 {v(t+4)}, {v(t+4)}, 4, s4
v_add_f32_dpp {v(t)}, {v(t)}, {v(t)} row_ror:8 row_mask:0xf bank_mask:0xf
ds_write_b32 {v(t+4)}, {v(t)}
""")


def stats2_final(p, r0, stflag, sg=4):
    t = r0 + 12
    p(f"""
v_and_b32 {v(t+4)}, 7, {LANE}
v_lshlrev_b32 {v(t+5)}, 5, {v(t+4)}
v_add_u32 {v(t+5)}, {S2_LDS}, {v(t+5)}
ds_read_b128 {v(r0, 4)}, {v(t+5)}
ds_read_b128 {v(r0+4, 4)}, {v(t+5)} offset:16
s_lshl_b32 s{sg}, {S_RB}, 4
s_add_u32 s{sg}, s{sg}, {S_CB}
s_lshl_b32 s{sg}, s{sg}, 6
s_add_u32 s{sg}, s{sg}, {WS_ST2}
v_lshl_add_u32 {v(t+4)}, {v(t+4)}, 3, s{sg}
v_mov_b32 {v(t+5)}, {OOB}
s_cmp_eq_u32 {S_WAVE}, 0
s_cselect_b32 s{sg}, 8, 0
v_cmp_gt_u32 vcc, s{sg}, {LANE}
v_cndmask_b32 {v(t+4)}, {v(t+5)}, {v(t+4)}, vcc
v_add_f32 {v(r0)}, {v(r0)}, {v(r0+1)}
v_add_f32 {v(r0+2)}, {v(r0+2)}, {v(r0+3)}
v_add_f32 {v(r0+4)}, {v(r0+4)}, {v(r0+5)}
v_add_f32 {v(r0+6)}, {v(r0+6)}, {v(r0+7)}
v_add_f32 {v(r0)}, {v(r0)}, {v(r0+2)}
v_add_f32 {v(r0+4)}, {v(r0+4)}, {v(r0+6)}
""")
    ln_finalize(p, r0, r0+4, r0+1, r0+3, r0+2)
    p(f"v_xor_b32 {v(r0+3)}, 0x80000000, {v(r0+3)}")
    p(f"buffer_store_dwordx2 {v(r0+2, 2)}, {v(t+4)}, {SRD_WS}, 0 offen {stflag}", tag='st2')


class G1Regs:
    def __init__(self):
        A = Alloc(2)
        self.aL16 = A()
        self.aHr = A()
        self.aExW = A()
        self.aExR = A()
        self.aGa = A()
        self.aGb = A()
        self.aSt = A()
        self.aCf = A()
        self.cfv = A()
        self.acc = [A(48, 4), A(48, 4)]
        self.cs = A(24, 4)
        self.fr = A(16, 4)
        self.st = A(8, 2)
        self.k = A(4, 2)
        self.t = A(12, 4)
        self.o = A(8, 4)
        self.tmp = A(24, 4)
        self.end = A.n


def w_loads(base_sgpr, vaddr, idx, ldflag, tag):
    L = []
    if idx % 4 == 0:
        L.append(Ins(f"s_add_u32 s{base_sgpr+1}, s{base_sgpr}, {idx*1024}"))
    L.append(Ins(f"buffer_load_dwordx4 {a(4*idx, 4)}, {v(vaddr)}, {SRD_WS}, s{base_sgpr+1} offen offset:{(idx%4)*1024} {ldflag}", tag))
    return L


def g1_setup(p, R):
    t = R.t
    p(f"""
v_lshlrev_b32 {v(R.aL16)}, 4, {LANE}
s_lshr_b32 s4, {S_WAVE}, 1
s_mul_i32 s5, s4, 20480
v_lshl_add_u32 {v(R.aHr)}, {LANE}, 3, s5
s_mul_i32 s5, {S_WAVE}, 6144
s_add_u32 s5, s5, {EX_LDS}
v_add_u32 {v(R.aExW)}, s5, {v(R.aL16)}
s_xor_b32 s5, {S_WAVE}, 2
s_mul_i32 s5, s5, 6144
s_add_u32 s5, s5, {EX_LDS}
v_add_u32 {v(R.aExR)}, s5, {v(R.aL16)}
s_mul_i32 s5, {S_RB}, {4*2*49152}
s_lshl_b32 s6, {S_CB}, 2
s_add_u32 s6, s6, {S_WAVE}
s_mul_i32 s7, s6, 768
s_add_u32 s5, s5, s7
s_add_u32 s5, s5, {WS_G}
v_bfe_u32 {v(t)}, {LANE}, 4, 1
v_mul_u32_u24 {v(t)}, 49152, {v(t)}
v_and_b32 {v(t+1)}, 15, {LANE}
v_lshl_add_u32 {v(t)}, {v(t+1)}, 4, {v(t)}
v_add_u32 {v(t)}, s5, {v(t)}
v_lshrrev_b32 {v(t+1)}, 5, {LANE}
v_lshl_add_u32 {v(R.aGa)}, {v(t+1)}, 8, {v(t)}
v_add_u32 {v(t)}, 512, {v(t)}
v_mov_b32 {v(t+2)}, {OOB}
v_cmp_gt_u32 vcc, 32, {LANE}
v_cndmask_b32 {v(R.aGb)}, {v(t+2)}, {v(t)}, vcc
s_mul_i32 s72, {S_RB}, {4*40960}
s_mul_i32 s73, {S_WAVE}, 10240
s_add_u32 s72, s72, s73
s_add_u32 s72, s72, {WS_H}
s_lshl_b32 s4, {S_RB}, 10
s_add_u32 s4, s4, {WS_ST2}
v_and_b32 {v(t)}, 31, {LANE}
v_lshl_add_u32 {v(R.aSt)}, {v(t)}, 3, s4
s_lshl_b32 s4, {S_RB}, 4
s_add_u32 s4, s4, {S_CB}
s_lshl_b32 s4, s4, 7
s_lshl_b32 s5, {S_WAVE}, 2
s_add_u32 s4, s4, s5
s_add_u32 s4, s4, {WS_CF}
v_mov_b32 {v(t)}, s4
v_cmp_eq_u32 vcc, 0, {LANE}
v_cndmask_b32 {v(R.aCf)}, {v(t+2)}, {v(t)}, vcc
""")


def w_bases(p):
    p(f"""
s_lshl_b32 s6, {S_CB}, 2
s_add_u32 s6, s6, {S_WAVE}
s_mul_i32 s68, s6, 61440
s_add_u32 s68, s68, {WS_W1P}
s_lshl_b32 s6, {S_DT}, 2
s_add_u32 s6, s6, {S_WAVE}
s_mul_i32 s70, s6, 61440
s_add_u32 s70, s70, {WS_W2P}
""")


def g1_wloads(p, R, ldflag):
    for i in range(60):
        p.add(w_loads(68, R.aL16, i, ldflag, 'w1'))


def g1_cs_loads(p, R, ldflag):
    t = R.t
    p(f"""
s_mul_i32 s4, {S_CB}, 96
s_and_b32 s5, {S_WAVE}, 1
s_mul_i32 s5, s5, 48
s_add_u32 s4, s4, s5
s_lshr_b32 s5, {S_WAVE}, 1
s_lshl_b32 s5, s5, 3
s_add_u32 s4, s4, s5
s_lshl_b32 s4, s4, 2
s_add_u32 s4, s4, {WS_CS}
v_lshrrev_b32 {v(t)}, 5, {LANE}
v_lshl_add_u32 {v(t)}, {v(t)}, 4, s4
""")
    for kh in range(2):
        for m in range(2):
            p(f"s_mov_b32 s4, {(2*kh+m)*6144}")
            for tau in range(3):
                d = (R.cs, R.tmp)[kh] + 8*tau + 4*m
                p(f"buffer_load_dwordx4 {v(d, 4)}, {v(t)}, {SRD_WS}, s4 offen offset:{tau*64} {ldflag}")


def g1_cs_sum(p, R):
    for i in range(0, 24, 2):
        p(f"v_pk_add_f32 {v(R.cs+i, 2)}, {v(R.cs+i, 2)}, {v(R.tmp+i, 2)}")


def g1_dma(R, tt, ldflag):
    L = []
    for i in range(10):
        if i % 4 == 0:
            L.append(Ins(f"s_add_u32 s74, s73, {(tt % 3)*H_SLOT + i*1024}"))
            L.append(Ins(f"s_mov_b32 m0, s74"))
            L.append(Ins(f"s_add_u32 s74, s72, {tt*40960 + i*1024}"))
        L.append(Ins(f"buffer_load_dwordx4 {v(R.aL16)}, {SRD_WS}, s74 offen offset:{(i%4)*1024} {ldflag} lds", f'h{tt}'))
    return L


def g1_stat_loads(p, R, ldflag):
    for tt in range(4):
        p(f"buffer_load_dwordx2 {v(R.st+2*tt, 2)}, {v(R.aSt)}, {SRD_WS}, 0 offen offset:{tt*256} {ldflag}")


GC1 = -2.0 * 0.7978845608028654 * LOG2E
GC2 = GC1 * 0.044715


def g1_send(R, tt):
    A = R.acc[tt & 1]
    return [Ins(f"ds_write_b128 {v(R.aExW)}, {v(A+16*tau+4+8*m, 4)} offset:{(2*tau+m)*1024}")
            for tau in range(3) for m in range(2)]


def g1_recv(R, tt):
    A = R.acc[tt & 1]
    return [Ins(f"ds_read_b128 {v(A+16*tau+4+8*m, 4)}, {v(R.aExR)} offset:{(2*tau+m)*1024}")
            for tau in range(3) for m in range(2)]


def g1_epilogue(R, tt, stflag):
    A = R.acc[tt & 1]
    P = Prog()
    sd, nm = R.st + 2*tt, R.st + 2*tt + 1
    k1, k2, s2 = R.k, R.k + 1, R.k + 2
    P(f"""
v_rcp_f32 {v(k1)}, {v(sd)}
v_mul_f32 {v(s2)}, {v(sd)}, {v(sd)}
v_mul_f32 {v(k2)}, {v(k1)}, {v(k1)}
v_mul_f32 {v(k2)}, {v(k2)}, {v(k1)}
v_mul_f32 {v(k1)}, {f32(GC1)}, {v(k1)}
v_mul_f32 {v(k2)}, {f32(GC2)}, {v(k2)}
""")
    for tau in range(3):
        g, u = A + 16*tau, A + 16*tau + 8
        T = R.t
        for r in range(4):
            P(f"v_fma_f32 {v(g+r)}, {v(nm)}, {v(R.cs+8*tau+r)}, {v(g+r)}")
        for r in range(4):
            P(f"v_add_f32 {v(g+r)}, {v(g+r)}, {v(g+4+r)}")
        for r in range(4):
            P(f"v_mul_f32 {v(T+r)}, {v(g+r)}, {v(g+r)}")
        for r in range(4):
            P(f"v_fma_f32 {v(T+r)}, {v(T+r)}, {v(k2)}, {v(k1)}")
        for r in range(4):
            P(f"v_mul_f32 {v(T+r)}, {v(T+r)}, {v(g+r)}")
        for r in range(4):
            P(f"v_exp_f32 {v(T+r)}, {v(T+r)}")
            P(f"v_fma_f32 {v(u+r)}, {v(nm)}, {v(R.cs+8*tau+4+r)}, {v(u+r)}")
            P(f"v_add_f32 {v(u+r)}, {v(u+r)}, {v(u+4+r)}")
        for r in range(4):
            P(f"v_fma_f32 {v(T+r)}, {v(T+r)}, {v(s2)}, {v(s2)}")
        for r in range(4):
            P(f"v_rcp_f32 {v(T+r)}, {v(T+r)}")
            P(f"v_mul_f32 {v(g+r)}, {v(g+r)}, {v(u+r)}")
        for r in range(4):
            P(f"v_mul_f32 {v(g+r)}, {v(g+r)}, {v(T+r)}")
        P(f"v_cvt_pk_bf16_f32 {v(R.o+2*tau)}, {v(g)}, {v(g+1)}")
        P(f"v_cvt_pk_bf16_f32 {v(R.o+2*tau+1)}, {v(g+2)}, {v(g+3)}")
        if tau == 1:
            P(f"s_mov_b32 s75, {tt*2*49152}")
            P(f"buffer_store_dwordx4 {v(R.o, 4)}, {v(R.aGa)}, {SRD_WS}, s75 offen {stflag}", tag=f'g{tt}')
    P(f"v_permlane32_swap_b32 {v(R.o+4)}, {v(R.o+6)}")
    P(f"v_permlane32_swap_b32 {v(R.o+5)}, {v(R.o+7)}")
    P(f"buffer_store_dwordx4 {v(R.o+4, 4)}, {v(R.aGb)}, {SRD_WS}, s75 offen {stflag}", tag=f'g{tt}')
    return P.items


def slots(i):
    return 2 if (i.kind == 'valu' and i.trans) else (0 if i.kind in ('wait_vm', 'flush') else 1)


def pack_gaps(main, fixed, queue, cap):
    out, j = [], 0
    for g, m in enumerate(main):
        out.append(m)
        used = 0
        for it in fixed.get(g, []):
            out.append(it)
            used += slots(it)
        while j < len(queue) and queue[j][0] <= g and used + slots(queue[j][1]) <= cap:
            out.append(queue[j][1])
            used += slots(queue[j][1])
            j += 1
    out += [q[1] for q in queue[j:]]
    return out


def g1_main(p, R, ldflag, stflag, w2flag=None, cap=5, hooks=None):
    AH = 3

    def hread(gs):
        tt, s = divmod(gs, 20)
        o = ((tt % 3)*H_SLOT + s*1024) // 512
        return Ins(f"ds_read2st64_b64 {v(R.fr+4*(gs % 4), 4)}, {v(R.aHr)} offset0:{o} offset1:{o+1}")

    def wv(tag):
        q = Prog()
        q.wait_vm(tag)
        return q.items[0]

    hooks = hooks or {}
    p.wait_vm('h0')
    p("s_waitcnt lgkmcnt(0)\ns_barrier")
    for gs in range(AH):
        p.add([hread(gs)])
    for tt in range(4):
        A = R.acc[tt & 1]
        main, fixed, queue = [], {}, []
        for s in range(20):
            for tau in range(3):
                d = v(A+16*tau, 16)
                main.append(Ins(f"v_mfma_f32_32x32x16_bf16 {d}, {a(12*s+4*tau, 4)}, {v(R.fr+4*((20*tt+s) % 4), 4)}, {'0' if s == 0 else d}"))
            if 20*tt + s + AH < 80:
                fixed.setdefault(3*s, []).append(hread(20*tt + s + AH))
        if tt >= 1:
            snd = g1_send(R, tt-1)
            for i, it in enumerate(snd):
                fixed.setdefault(1 + i, []).append(it)
        if tt >= 1:
            fixed.setdefault(9, []).extend([Ins("s_waitcnt lgkmcnt(1)"), Ins("s_barrier")])
        fixed.setdefault(43, []).extend(([wv(f'h{tt+1}')] if tt < 3 else []) + [Ins("s_barrier")])
        if tt >= 1:
            for i, it in enumerate(g1_recv(R, tt-1)):
                fixed.setdefault(10 + i//2, []).append(it)
            queue += [(hooks.get(('epi', tt), 13), it) for it in g1_epilogue(R, tt-1, stflag)]
        for g, items in hooks.get(('fixed', tt), {}).items():
            fixed.setdefault(g, []).extend(items)
        queue = hooks.get(('queue', tt), []) + queue
        if tt == 1:
            for i, it in enumerate(g1_dma(R, 3, ldflag)):
                fixed.setdefault(11 + 2*i, []).append(it)
        if tt == 3 and w2flag is not None:
            for i in range(28):
                fixed.setdefault(3 + 2*i, []).extend(w_loads(70, R.aL16, i, w2flag, 'w2'))
        p.add(pack_gaps(main, fixed, queue, cap))
    p.add(g1_send(R, 3))
    p("s_waitcnt lgkmcnt(0)\ns_barrier")
    p.add(g1_recv(R, 3))
    tail = g1_epilogue(R, 3, stflag)
    if w2flag is not None:
        rest = [w_loads(70, R.aL16, i, w2flag, 'w2') for i in range(28, 60)]
        out = []
        for i, it in enumerate(tail):
            out.append(it)
            if i % 4 == 3 and rest:
                out += rest.pop(0)
        for r in rest:
            out += r
        tail = out
    p.add(tail)


RED_G, RED_D, RED_W, RED_SLOT = 288, 1152, 5760, 23040


class G2Regs:
    def __init__(self):
        A = Alloc(2)
        self.aL16 = A()
        self.aRw = A()
        self.aRr = A()
        self.aHres = A()
        self.aOut = A()
        self.t = A(4, 4)
        self.fr = [A(48, 4), A(48, 4)]
        self.acc = [A(20, 4), A(20, 4)]
        self.res = A(16, 4)
        self.pt = A(32, 4)
        self.o = A(4, 4)


def g2_setup(p, R):
    t = R.t
    p(f"""
v_lshlrev_b32 {v(R.aL16)}, 4, {LANE}
s_mul_i32 s4, {S_WAVE}, {RED_W}
v_lshrrev_b32 {v(t)}, 4, {LANE}
v_mul_u32_u24 {v(t)}, {RED_G}, {v(t)}
v_and_b32 {v(t+1)}, 15, {LANE}
v_lshl_add_u32 {v(t)}, {v(t+1)}, 4, {v(t)}
v_add_u32 {v(R.aRw)}, s4, {v(t)}
v_lshrrev_b32 {v(t)}, 2, {LANE}
v_min_u32 {v(t)}, 9, {v(t)}
v_and_b32 {v(t+1)}, 3, {LANE}
s_lshl_b32 s4, {S_WAVE}, 2
v_add_u32 {v(t+1)}, s4, {v(t+1)}
v_mul_u32_u24 {v(t+2)}, {2*RED_G}, {v(t)}
v_lshl_add_u32 {v(R.aRr)}, {v(t+1)}, 4, {v(t+2)}
s_lshl_b32 s4, {S_SG}, 4
v_add_u32 {v(t+1)}, s4, {v(t+1)}
s_mul_i32 s4, {S_RB}, {4*40960}
s_mul_i32 s5, {S_DT}, {20*256}
s_add_u32 s4, s4, s5
s_add_u32 s4, s4, {WS_H}
v_lshlrev_b32 {v(t+2)}, 9, {v(t)}
v_lshl_add_u32 {v(t+2)}, {v(t+1)}, 3, {v(t+2)}
v_add_u32 {v(R.aHres)}, s4, {v(t+2)}
s_mul_i32 s4, {S_RB}, {128*1280}
s_mul_i32 s5, {S_DT}, 160
s_add_u32 s4, s4, s5
v_mul_u32_u24 {v(t+2)}, 1280, {v(t+1)}
v_lshl_add_u32 {v(t+2)}, {v(t)}, 4, {v(t+2)}
v_add_u32 {v(t+2)}, s4, {v(t+2)}
v_mov_b32 {v(t+3)}, {OOB}
v_cmp_gt_u32 vcc, 40, {LANE}
v_cndmask_b32 {v(R.aOut)}, {v(t+3)}, {v(t+2)}, vcc
s_lshl_b32 s4, {S_RB}, 3
s_add_u32 s4, s4, {S_SG}
s_mul_i32 s76, s4, 49152
s_mul_i32 s5, {S_WAVE}, 12288
s_add_u32 s76, s76, s5
s_add_u32 s76, s76, {WS_G}
""")


def g2_res_loads(p, R, ldflag):
    for tt in range(4):
        p(f"s_mov_b32 s4, {tt*40960}")
        for k in range(2):
            p(f"buffer_load_dwordx2 {v(R.res+4*tt+2*k, 2)}, {v(R.aHres)}, {SRD_WS}, s4 offen offset:{k*256} {ldflag}")


def g2_gloads(R, tt, ldflag):
    L = []
    for s in range(12):
        grp = []
        if s % 4 == 0:
            grp.append(Ins(f"s_add_u32 s77, s76, {tt*2*49152 + s*1024}"))
        grp.append(Ins(f"buffer_load_dwordx4 {v(R.fr[tt & 1]+4*s, 4)}, {v(R.aL16)}, {SRD_WS}, s77 offen offset:{(s%4)*1024} {ldflag}"))
        L.append(grp)
    return L


def g2_send(R, tt):
    return [Ins(f"ds_write_b128 {v(R.aRw)}, {v(R.acc[tt & 1]+4*d, 4)} offset:{(tt & 1)*RED_SLOT + d*RED_D}") for d in range(5)]


def g2_final(R, tt):
    P = Prog()
    for w in range(4):
        for k in range(2):
            P(f"ds_read_b128 {v(R.pt+8*w+4*k, 4)}, {v(R.aRr)} offset:{(tt & 1)*RED_SLOT + w*RED_W + k*RED_G}")
    for j in range(8):
        P(f"v_add_f32 {v(R.pt+j)}, {v(R.pt+j)}, {v(R.pt+8+j)}")
    for j in range(4):
        P(f"v_lshlrev_b32 {v(R.pt+8+2*j)}, 16, {v(R.res+4*tt+j)}")
        P(f"v_and_b32 {v(R.pt+8+2*j+1)}, 0xffff0000, {v(R.res+4*tt+j)}")
    for j in range(8):
        P(f"v_add_f32 {v(R.pt+16+j)}, {v(R.pt+16+j)}, {v(R.pt+24+j)}")
    for j in range(8):
        P(f"v_add_f32 {v(R.pt+j)}, {v(R.pt+j)}, {v(R.pt+8+j)}")
    for j in range(8):
        P(f"v_add_f32 {v(R.pt+j)}, {v(R.pt+j)}, {v(R.pt+16+j)}")
    for j in range(4):
        P(f"v_cvt_pk_bf16_f32 {v(R.o+j)}, {v(R.pt+2*j)}, {v(R.pt+2*j+1)}")
    P(f"s_mov_b32 s78, {tt*32*1280}")
    P(f"buffer_store_dwordx4 {v(R.o, 4)}, {v(R.aOut)}, {SRD_OUT}, s78 offen")
    return P.items


def g2_main(p, R, ldflag, gate=None):
    for tt in range(2):
        if gate:
            gate(p, tt)
        for grp in g2_gloads(R, tt, ldflag):
            p.add(grp)
    for tt in range(4):
        main, fixed, queue = [], {}, []
        for s in range(12):
            for d in range(5):
                c = v(R.acc[tt & 1]+4*d, 4)
                main.append(Ins(f"v_mfma_f32_16x16x32_bf16 {c}, {a(20*s+4*d, 4)}, {v(R.fr[tt & 1]+4*s, 4)}, {'0' if s == 0 else c}"))
        if tt >= 1:
            for i, it in enumerate(g2_send(R, tt-1)):
                fixed.setdefault(3 + i, []).append(it)
            fixed.setdefault(12, []).extend([Ins("s_waitcnt lgkmcnt(0)"), Ins("s_barrier")])
            queue += [(13, it) for it in g2_final(R, tt-1)]
        if tt + 2 < 4 and not gate:
            for s, grp in enumerate(g2_gloads(R, tt+2, ldflag)):
                fixed.setdefault(5*s + 4, []).extend(grp)
        p.add(pack_gaps(main, fixed, queue, 2))
        if tt + 2 < 4 and gate:
            gate(p, tt+2)
            for grp in g2_gloads(R, tt+2, ldflag):
                p.add(grp)
    p.add(g2_send(R, 3))
    p("s_waitcnt lgkmcnt(0)\ns_barrier")
    p.add(g2_final(R, 3))
```

```python
import sys, os
import phases
phases.STAMPS = bool(os.environ.get('STAMPS'))
from phases import *

NAME = 'sequential_preLN__ssm_conv_s4__geglu_ffn__prompt'
REF = open(f'cdna_kernels/{NAME}.s.ref').read()
HEAD = ''.join(l + '\n' for l in REF.split('\n') if l.startswith(';') and '@launch' not in l)
LDS = max(G1_LDS_END, CONV_LDS_END)
SPIN_MAX = 1 << 18
_uid = [0]


def spin(p, loads, cond, sleep=2):
    _uid[0] += 1
    L = f'L_spin{_uid[0]}'
    p(f"s_mov_b32 s90, 0\n{L}:")
    p(loads)
    p("s_waitcnt vmcnt(0)")
    p(cond)
    p(f"""
s_nop 4
s_cbranch_vccz {L}_done
s_sleep {sleep}
s_add_u32 s90, s90, 1
s_cmp_lt_u32 s90, {SPIN_MAX}
s_cbranch_scc1 {L}
{L}_done:
""")


def wait_init_flags(p, t):
    p(f"v_lshlrev_b32 {v(t)}, 2, {LANE}")
    spin(p, f"buffer_load_dword {v(t+1)}, {v(t)}, {SRD_DBG}, 0 offen sc1", f"v_cmp_eq_u32 vcc, 0, {v(t+1)}", 4)


def wait_pack_flags(p, t):
    p(f"""
v_lshlrev_b32 {v(t)}, 7, {LANE}
v_add_u32 {v(t)}, {WS_FLAG + 160*128}, {v(t)}
v_add_u32 {v(t+1)}, {32*128}, {v(t)}
""")
    spin(p, f"buffer_load_dword {v(t+2)}, {v(t)}, {SRD_WS}, 0 offen sc1\nbuffer_load_dword {v(t+3)}, {v(t+1)}, {SRD_WS}, 0 offen sc1",
         f"v_min_u32 {v(t+2)}, {v(t+2)}, {v(t+3)}\nv_cmp_eq_u32 vcc, 0, {v(t+2)}", 4)


def publish_wg_flag(p, t, value):
    p(f"""
s_barrier
s_lshl_b32 s4, s2, 7
s_add_u32 s4, s4, {WS_FLAG}
s_cmp_eq_u32 {S_WAVE}, 0
s_cselect_b32 s5, 1, 0
v_mov_b32 {v(t)}, s4
v_mov_b32 {v(t+1)}, {OOB}
v_cmp_gt_u32 vcc, s5, {LANE}
v_cndmask_b32 {v(t)}, {v(t+1)}, {v(t)}, vcc
v_mov_b32 {v(t+1)}, {value}
buffer_store_dword {v(t+1)}, {v(t)}, {SRD_WS}, 0 offen sc1
""")


def code_prefetch(p, t):
    p(f"""
s_getpc_b64 s[80:81]
L_pc:
s_sub_u32 s80, s80, L_pc-{NAME}_kernel
s_subb_u32 s81, s81, 0
s_lshl_b32 s4, {S_WAVE}, 13
v_lshl_add_u32 {v(t)}, {LANE}, 7, s4
v_add_u32 {v(t+1)}, 32768, {v(t)}
v_min_u32 {v(t)}, L_code_end-{NAME}_kernel-4, {v(t)}
v_min_u32 {v(t+1)}, L_code_end-{NAME}_kernel-4, {v(t+1)}
global_load_dword {v(t)}, {v(t)}, s[80:81]
global_load_dword {v(t+1)}, {v(t+1)}, s[80:81]
""")


def build():
    p = Prog()
    prologue(p, 256, 'L_end')
    ffn_coords(p)
    w_bases(p)
    code_prefetch(p, 254)
    G1 = G1Regs()
    p("s_cmp_ge_u32 s2, 160\ns_cbranch_scc1 L_helper")

    p("s_and_b32 s4, s2, 7\ns_mul_i32 s4, s4, 20\ns_lshr_b32 s5, s2, 3\ns_add_u32 s15, s4, s5")
    R = ConvRegs()
    conv_loads(p, R, 's15')
    conv_addresses(p, R, 's15')
    stamp(p, 1)
    kgen(p, R)
    stamp(p, 2)
    conv_xprep(p, R)
    stamp(p, 3)
    wait_init_flags(p, R.t)
    q = Prog()
    conv_stat_loads(q, R, 'sc1')
    cond = '\n'.join(f"v_min_u32 {v(R.t)}, {v(R.t) if i > 1 else v(R.st)}, {v(R.st+2*i)}" for i in range(1, 8))
    spin(p, render(q.items), cond + f"\nv_cmp_eq_u32 vcc, 0, {v(R.t)}")
    stamp(p, 4)
    conv_normalize(p, R)
    wait_pack_flags(p, R.t)
    stamp(p, 5)
    p(f"v_lshlrev_b32 v253, 4, {LANE}")
    conv_main(p, R, 'sc1', extra=[w_loads(68, 253, i, 'sc1', 'w1') for i in range(60)])
    stamp(p, 6)
    p("s_waitcnt vmcnt(0)")
    publish_wg_flag(p, R.t, 2)
    stamp(p, 7)
    p("s_branch L_ffn")
    p.flush()

    p("L_helper:\ns_sub_u32 s15, s2, 160\ns_cmp_ge_u32 s15, 64\ns_cbranch_scc1 L_h_pack")
    p(f"""
v_mov_b32 v60, 0
v_mov_b32 v61, 0
v_mov_b32 v62, 0
v_mov_b32 v63, 0
s_lshl_b32 s4, s15, 8
v_and_b32 v56, 15, {LANE}
v_lshl_add_u32 v56, v56, 4, s4
v_bfe_u32 v57, {LANE}, 4, 1
v_lshl_add_u32 v56, v57, 14, v56
s_lshl_b32 s4, s15, 10
s_add_u32 s4, s4, {WS_FLAG - 32*128}
v_lshl_add_u32 v57, {LANE}, 7, s4
v_cmp_gt_u32 vcc, 32, {LANE}
v_cndmask_b32 v56, v57, v56, vcc
s_cmp_eq_u32 {S_WAVE}, 0
s_cselect_b32 s4, 40, 0
v_mov_b32 v57, {OOB}
v_cmp_gt_u32 vcc, s4, {LANE}
v_cndmask_b32 v56, v57, v56, vcc
""")
    p(f"buffer_store_dwordx4 v[60:63], v56, {SRD_WS}, 0 offen sc1", tag='zero')
    stats1_loads(p, 's15')
    p.wait_vm('zero')
    p(f"""
s_barrier
s_lshl_b32 s4, s15, 2
s_cmp_eq_u32 {S_WAVE}, 0
s_cselect_b32 s5, 1, 0
v_mov_b32 v56, s4
v_cmp_gt_u32 vcc, s5, {LANE}
v_cndmask_b32 v56, v57, v56, vcc
v_mov_b32 v58, 1
buffer_store_dword v58, v56, {SRD_DBG}, 0 offen sc1
""")
    stats1_compute(p, 's15', 'sc1')
    stamp(p, 8)
    p("L_h_pack:")
    pack1_loads(p, 's15')
    pack1_compute(p, 's15', 'sc1')
    stamp(p, 9)
    wait_init_flags(p, 56)
    publish_wg_flag(p, 56, 1)
    stamp(p, 10)
    p("s_cmp_ge_u32 s15, 80\ns_cbranch_scc1 L_h_done")
    pack2_loads(p, 's15')
    pack2_compute(p, 's15', 'sc1')
    p("L_h_done:\ns_waitcnt vmcnt(0)")
    publish_wg_flag(p, 56, 2)
    stamp(p, 11)
    wait_pack_flags(p, 56)
    p(f"v_lshlrev_b32 v253, 4, {LANE}")
    for i in range(60):
        p.add(w_loads(68, 253, i, 'sc1', 'w1'))
    p("s_waitcnt vmcnt(0)")
    stamp(p, 12)

    p("L_ffn:")
    R = G1
    g1_setup(p, R)
    g1_cs_loads(p, R, 'sc1')
    g1_cs_sum(p, R)
    t = R.t
    p(f"s_lshl_b32 s4, {S_WAVE}, 13\ns_add_u32 s4, s4, {WS_FLAG}\nv_lshl_add_u32 {v(t)}, {LANE}, 7, s4")
    spin(p, f"buffer_load_dword {v(t+1)}, {v(t)}, {SRD_WS}, 0 offen sc1", f"v_cmp_ne_u32 vcc, 2, {v(t+1)}", 2)
    p("s_barrier")
    stamp(p, 13)
    stats2_loads(p, R.tmp, 'sc1')
    for tt in range(3):
        p.add(g1_dma(R, tt, 'sc1'))
    stats2_partial(p, R.tmp)
    stamp(p, 14)
    hooks = {}
    q = Prog()
    stats2_final(q, R.tmp, 'sc1')
    hooks[('queue', 0)] = [(0, it) for it in q.items]
    q = Prog()
    g1_stat_loads(q, R, 'sc1')
    ld = render(q.items)
    cond = f"v_min_u32 {v(t)}, {v(R.st)}, {v(R.st+2)}\nv_min3_u32 {v(t)}, {v(t)}, {v(R.st+4)}, {v(R.st+6)}\nv_cmp_eq_u32 vcc, 0, {v(t)}"
    chk = Prog()
    chk(cond + "\ns_nop 4\ns_cbranch_vccz L_st2_ok")
    spin(chk, ld, cond)
    chk("L_st2_ok:")

    def cflag(tt):
        c = Prog()
        c.wait_vm(f'g{tt}')
        c(f"v_mov_b32 {v(R.cfv)}, {tt+1}\nbuffer_store_dword {v(R.cfv)}, {v(R.aCf)}, {SRD_WS}, 0 offen sc1")
        return c.items
    unconditional = [it for it in chk.items]
    for it in unconditional:
        if it.op == 's_waitcnt':
            it.op = 's_waitcnt_untracked'
        if it.kind == 'vm':
            it.kind = 'other'
    hooks[('fixed', 1)] = {2: q.items, 22: unconditional}
    hooks[('epi', 1)] = 23
    hooks[('fixed', 2)] = {30: cflag(0)}
    hooks[('fixed', 3)] = {1: cflag(1)}
    g1_main(p, R, 'sc1', 'sc1', w2flag='sc1', hooks=hooks)
    stamp(p, 15)
    p.add(cflag(3))
    G2 = G2Regs()
    g2_setup(p, G2)
    p(f"""
s_lshl_b32 s4, {S_RB}, 2
s_add_u32 s4, s4, {S_WAVE}
s_lshl_b32 s4, s4, 9
s_add_u32 s4, s4, {WS_CF}
v_bfe_u32 v250, {LANE}, 2, 2
v_lshlrev_b32 v250, 7, v250
v_and_b32 v251, 3, {LANE}
v_lshl_add_u32 v250, v251, 2, v250
v_add_u32 v250, s4, v250
""")
    g2_res_loads(p, G2, 'sc1')

    def gate(pp, tt):
        if tt in (0, 2):
            spin(pp, f"buffer_load_dword v251, v250, {SRD_WS}, 0 offen sc1", f"v_cmp_gt_u32 vcc, {tt+2}, v251", 1)
            stamp(pp, 16 + tt//2)
    g2_main(p, G2, 'sc1', gate=gate)
    stamp(p, 18)
    p("L_end:\ns_endpgm\nL_code_end:")
    s = HEAD + f"; @launch grid=(256,1,1) block=(256,1,1) lds={LDS}\n"
    s += '.amdgcn_target "amdgcn-amd-amdhsa--gfx950"\n'
    s += kernel(f'{NAME}_kernel', p)
    return s


if __name__ == '__main__':
    open(sys.argv[1], 'w').write(build())
```

```python
from asmlib import *
import struct

WS_ST1, WS_ST2, WS_CS, WS_FLAG, WS_CF = 0, 0x4000, 0x8000, 0x18000, 0x20000
WS_W1P, WS_W2P, WS_H, WS_G, WS_SIZE = 0x100000, 0x4C0000, 0x6A0000, 0x920000, 0xF20000
OOB = 0x7ffffff0
WS_STAMP = 0x40000
STAMPS = False
DIAG = None


def stamp(p, idx):
    if DIAG is not None and DIAG == idx:
        p("s_waitcnt lgkmcnt(0)\ns_memrealtime s[96:97]\ns_waitcnt lgkmcnt(0)\ns_sub_u32 s99, s96, s94")
    if not STAMPS:
        return
    p(f"""
s_memrealtime s[96:97]
s_memtime s[92:93]
s_waitcnt lgkmcnt(0)
v_writelane_b32 v1, s96, {idx}
v_writelane_b32 v1, s92, {32+idx}
""")


def stamp_items(idx):
    q = Prog()
    stamp(q, idx)
    return q.items


def stamp_dump(p):
    if not STAMPS:
        return
    p(f"""
s_lshl_b32 s98, s2, 2
s_add_u32 s98, s98, s3
s_lshl_b32 s98, s98, 8
s_add_u32 s98, s98, {WS_STAMP}
v_lshlrev_b32 v2, 2, v0
buffer_store_dword v1, v2, s[48:51], s98 offen
""")


P_X, P_ARE, P_AIM, P_BRE, P_BIM, P_CRE, P_CIM, P_LDT = [f's[{16+2*i}:{17+2*i}]' for i in range(8)]
P_DSK = 's[32:33]'
SRD_WS, SRD_OUT, SRD_W, SRD_DBG = 's[48:51]', 's[52:55]', 's[56:59]', 's[60:63]'
S_WAVE = 's3'
LANE = 'v0'


def f32(x):
    return hex(struct.unpack('<I', struct.pack('<f', x))[0])


class Alloc:
    def __init__(self, start, kind='v', limit=256):
        self.n, self.kind, self.limit = start, kind, limit

    def __call__(self, n=1, align=None):
        align = align or (2 if n > 1 else 1)
        self.n = (self.n + align - 1) // align * align
        r = self.n
        self.n += n
        assert self.n <= self.limit, 'out of registers'
        return r


def v(i, n=1):
    return f'v{i}' if n == 1 else f'v[{i}:{i+n-1}]'


def a(i, n=1):
    return f'a{i}' if n == 1 else f'a[{i}:{i+n-1}]'


def prologue(p, nwg, exit_label, first_stamp=0):
    p(f"""
s_cmp_ge_u32 s2, {nwg}
s_cbranch_scc1 {exit_label}
{'s_memrealtime s[94:95]' if (STAMPS or DIAG is not None) else ''}
{'s_mov_b32 s99, 0' if DIAG is not None else ''}
{'s_memtime s[92:93]' if STAMPS else ''}
s_load_dwordx16 s[16:31], s[0:1], 0
s_load_dwordx16 s[32:47], s[0:1], 64
v_lshrrev_b32 v1, 6, v0
v_and_b32 v0, 63, v0
v_readfirstlane_b32 {S_WAVE}, v1
s_mov_b32 s50, {WS_SIZE}
s_mov_b32 s51, 0x20000
s_mov_b32 s54, 2621440
s_mov_b32 s55, 0x20000
s_mov_b32 s58, 1966080
s_mov_b32 s59, 0x20000
s_mov_b32 s62, 256
s_mov_b32 s63, 0x20000
s_waitcnt lgkmcnt(0)
s_mov_b32 s48, s46
s_mov_b32 s49, s47
s_mov_b32 s52, s42
s_mov_b32 s53, s43
s_mov_b32 s60, s44
s_mov_b32 s61, s45
""")
    if STAMPS:
        p(f"""
v_mov_b32 v1, 0xa5a5a5a5
v_writelane_b32 v1, s94, {first_stamp}
v_writelane_b32 v1, s92, {32+first_stamp}
""")


def ln_finalize(p, s1, s2, t, mb, sd):
    p(f"""
v_mul_f32 {v(s1)}, {f32(1/640)}, {v(s1)}
v_mul_f32 {v(s2)}, {f32(1/640)}, {v(s2)}
v_fma_f32 {v(s2)}, -{v(s1)}, {v(s1)}, {v(s2)}
v_max_f32 {v(s2)}, 0, {v(s2)}
v_cvt_pk_bf16_f32 {v(t)}, {v(s1)}, {v(s2)}
v_lshlrev_b32 {v(mb)}, 16, {v(t)}
v_and_b32 {v(t)}, 0xffff0000, {v(t)}
v_add_f32 {v(t)}, {f32(1e-5)}, {v(t)}
v_cvt_pk_bf16_f32 {v(t)}, {v(t)}, {v(t)}
v_and_b32 {v(t)}, 0xffff0000, {v(t)}
v_sqrt_f32 {v(t)}, {v(t)}
v_cvt_pk_bf16_f32 {v(t)}, {v(t)}, {v(t)}
v_and_b32 {v(sd)}, 0xffff0000, {v(t)}
""")


def stats1_loads(p, hi, r0=8):
    p(f"""
s_lshr_b32 s4, {hi}, 4
s_lshr_b32 s5, {hi}, 2
s_and_b32 s5, s5, 3
s_and_b32 s6, {hi}, 3
s_lshl_b32 s6, s6, 2
s_add_u32 s6, s6, {S_WAVE}
s_lshl_b32 s6, s6, 7
s_lshl_b32 s5, s5, 3
s_lshl_b32 s4, s4, 1
s_add_u32 s6, s6, s5
s_add_u32 s6, s6, s4
v_lshrrev_b32 v2, 4, {LANE}
v_lshlrev_b32 v2, 5, v2
v_bfe_u32 v3, {LANE}, 3, 1
v_add3_u32 v2, v2, v3, s6
v_mul_u32_u24 v2, 1280, v2
v_and_b32 v3, 7, {LANE}
v_lshl_add_u32 v2, v3, 4, v2
""")
    for i in range(10):
        p(f"global_load_dwordx4 {v(r0+4*i, 4)}, v2, {P_X} offset:{i*128}")


def stats1_compute(p, hi, stflag, r0=8):
    p("s_mov_b32 s4, 0x3f803f80")
    for r in range(4, 8):
        p(f"v_mov_b32 {v(r)}, 0")
    for i in range(40):
        p(f"v_dot2c_f32_bf16 {v(4+(i&1))}, s4, {v(r0+i)}")
        p(f"v_dot2c_f32_bf16 {v(6+(i&1))}, {v(r0+i)}, {v(r0+i)}")
    p("v_add_f32 v4, v4, v5\nv_add_f32 v6, v6, v7")
    for d in ('quad_perm:[1,0,3,2]', 'quad_perm:[2,3,0,1]', 'row_half_mirror'):
        p(f"v_add_f32_dpp v4, v4, v4 {d} row_mask:0xf bank_mask:0xf")
        p(f"v_add_f32_dpp v6, v6, v6 {d} row_mask:0xf bank_mask:0xf")
    ln_finalize(p, 4, 6, 5, 7, 8)
    p(f"""
v_rcp_f32 v10, v8
s_lshl_b32 s4, {hi}, 8
s_lshl_b32 s5, {S_WAVE}, 6
s_add_u32 s4, s4, s5
v_or_b32 v10, 1, v10
v_mul_f32 v11, -v7, v10
v_and_b32 v3, 7, {LANE}
v_add_u32 v2, s4, {LANE}
v_cmp_eq_u32 vcc, 0, v3
v_mov_b32 v9, {OOB}
v_cndmask_b32 v2, v9, v2, vcc
buffer_store_dwordx2 v[10:11], v2, {SRD_WS}, 0 offen {stflag}
""", tag='st1')


PW1_LDS, PW2_LDS = 0, 40960
SRD_W2 = 's[84:87]'


def lane_swap_addr(p, d, t):
    p(f"""
v_lshrrev_b32 {v(t)}, 1, {LANE}
v_xor_b32 {v(t)}, {v(t)}, {LANE}
v_bfe_u32 {v(t)}, {v(t)}, 1, 1
v_mul_u32_u24 {v(t)}, 6, {v(t)}
v_xor_b32 {v(t)}, {v(t)}, {LANE}
v_lshlrev_b32 {v(d)}, 4, {v(t)}
""")


def pack1_loads(p, hi):
    p(f"""
s_bitcmp1_b32 {S_WAVE}, 1
s_cselect_b32 s56, s38, s36
s_cselect_b32 s57, s39, s37
s_and_b32 s4, {hi}, 3
s_mul_i32 s4, s4, 160
s_and_b32 s5, {S_WAVE}, 1
s_mul_i32 s5, s5, 80
s_add_u32 s4, s4, s5
s_mul_i32 s4, s4, 3072
s_lshr_b32 s5, {hi}, 2
s_lshl_b32 s5, s5, 7
s_add_u32 s4, s4, s5
v_lshrrev_b32 v50, 3, {LANE}
v_mul_u32_u24 v50, 3072, v50
s_and_b32 s5, {S_WAVE}, 2
s_lshl_b32 s5, s5, 1
v_lshrrev_b32 v51, 4, {LANE}
v_or_b32 v51, s5, v51
v_xor_b32 v51, v51, {LANE}
v_and_b32 v51, 7, v51
v_lshl_add_u32 v50, v51, 4, v50
s_mul_i32 s5, {S_WAVE}, 10240
""")
    for i in range(10):
        p(f"s_add_u32 m0, s5, {PW1_LDS + i*1024}")
        p(f"buffer_load_dwordx4 v50, {SRD_W}, s4 offen lds", tag='pk1')
        p(f"s_add_u32 s4, s4, {8*3072}")


def pack1_compute(p, hi, stflag):
    p(f"""
v_lshrrev_b32 v2, 2, {LANE}
v_lshlrev_b32 v2, 7, v2
v_and_b32 v3, 1, {LANE}
v_mul_u32_u24 v4, 20480, v3
v_bfe_u32 v5, {LANE}, 1, 1
v_lshl_add_u32 v4, v5, 3, v4
v_bfe_u32 v5, {LANE}, 3, 2
v_lshl_add_u32 v5, v3, 2, v5
s_lshl_b32 s4, {S_WAVE}, 1
v_xor_b32 v5, s4, v5
v_lshl_add_u32 v4, v5, 4, v4
v_add3_u32 v2, v2, v4, {PW1_LDS}
v_xor_b32 v3, 16, v2
v_lshlrev_b32 v4, 4, {LANE}
v_mov_b32 v6, 0
v_mov_b32 v7, 0
s_mov_b32 s10, 0x3f803f80
s_lshr_b32 s6, {hi}, 2
s_lshl_b32 s6, s6, 3
s_lshl_b32 s7, {S_WAVE}, 1
s_add_u32 s6, s6, s7
s_and_b32 s7, {hi}, 3
""")
    p.wait_vm('pk1')
    p("s_barrier")
    for e in range(2):
        for i in range(5):
            r = 64 + 4*(5*e+i)
            p(f"ds_read_b64_tr_b16 {v(r, 2)}, {v(2+e)} offset:{i*4096}")
            p(f"ds_read_b64_tr_b16 {v(r+2, 2)}, {v(2+e)} offset:{i*4096 + 2048}")
    for e in range(2):
        p(f"""
s_add_u32 s8, s6, {e}
s_mul_i32 s9, s8, 171
s_lshr_b32 s9, s9, 9
s_mul_i32 s9, s9, 57
s_add_u32 s9, s9, s8
s_mul_i32 s8, s7, 15
s_add_u32 s9, s9, s8
s_lshl_b32 s9, s9, 10
s_add_u32 s9, s9, {WS_W1P}
""")
        for i in range(5):
            r = 64 + 4*(5*e+i)
            p(f"buffer_store_dwordx4 {v(r, 4)}, v4, {SRD_WS}, s9 offen {stflag}", tag='w1p')
            p("s_add_u32 s9, s9, 3072")
    for e in range(2):
        for k in range(20):
            p(f"v_dot2c_f32_bf16 {v(6+e)}, s10, {v(64+20*e+k)}")
    p(f"""
v_permlane32_swap_b32 v6, v7
s_mul_i32 s8, s7, 192
s_add_u32 s8, s8, s6
s_lshl_b32 s8, s8, 6
s_add_u32 s8, s8, {WS_CS}
v_add_f32 v6, v6, v7
v_mov_b32 v7, v6
v_lshrrev_b32 v8, 5, {LANE}
v_bfe_u32 v9, v252, 4, 4
v_permlane16_swap_b32 v6, v7
v_lshl_add_u32 v8, v8, 4, v9
v_lshlrev_b32 v8, 2, v8
v_add_f32 v6, v6, v7
""")
    p(f"buffer_store_dword v6, v8, {SRD_WS}, s8 offen {stflag}", tag='w1p')


def pack2_loads(p, hi):
    p(f"""
s_mov_b32 s84, s40
s_mov_b32 s85, s41
s_mov_b32 s86, 1966080
s_mov_b32 s87, 0x20000
s_mul_i32 s12, {hi}, 205
s_lshr_b32 s12, s12, 10
s_mul_i32 s13, s12, 5
s_sub_u32 s13, {hi}, s13
s_mul_i32 s4, s12, 96
s_mul_i32 s5, {S_WAVE}, 24
s_add_u32 s4, s4, s5
s_mul_i32 s4, s4, 1280
s_lshl_b32 s5, s13, 8
s_add_u32 s4, s4, s5
v_lshrrev_b32 v52, 4, {LANE}
v_mul_u32_u24 v52, 1280, v52
v_and_b32 v53, 15, {LANE}
v_lshl_add_u32 v52, v53, 4, v52
v_add_u32 v52, s4, v52
s_mul_i32 s5, {S_WAVE}, 6144
""")
    for i in range(6):
        p(f"s_add_u32 m0, s5, {PW2_LDS + i*1024}")
        p(f"buffer_load_dwordx4 v52, {SRD_W2}, 0 offen lds", tag='pk2')
        p(f"v_add_u32 v52, {4*1280}, v52")


def g_granule_cols(g12):
    w, g = divmod(g12, 3)
    return [24*w + c for c in (2*g, 2*g+1, 8+2*g, 9+2*g, 16+2*g, 17+2*g, 8*g+6, 8*g+7)]


def pack2_compute(p, hi, stflag):
    p(f"""
v_lshrrev_b32 v2, 4, {LANE}
v_lshlrev_b32 v2, 3, v2
v_bfe_u32 v3, {LANE}, 2, 1
v_lshlrev_b32 v3, 8, v3
v_and_b32 v4, 3, {LANE}
v_lshl_add_u32 v3, v4, 3, v3
s_lshl_b32 s4, {S_WAVE}, 6
s_add_u32 s4, s4, {PW2_LDS}
v_add_u32 v3, s4, v3
v_lshlrev_b32 v10, 4, {LANE}
v_and_b32 v11, 8, {LANE}
v_cmp_eq_u32 vcc, 0, v11
""")
    for s3 in range(3):
        for k in range(2):
            c = [sum(g_granule_cols(4*s3+g)[4*k+2*hf] << (8*g) for g in range(4)) for hf in range(2)]
            r = 4 + 2*s3 + k
            p(f"v_mov_b32 v12, {hex(c[0])}\nv_mov_b32 v13, {hex(c[1])}\nv_cndmask_b32 v12, v13, v12, vcc")
            p(f"v_bfe_u32 {v(r)}, v12, v2, 8\nv_lshl_add_u32 {v(r)}, {v(r)}, 8, v3")
    p.wait_vm('pk2')
    p("s_barrier")
    for e in range(2):
        for s3 in range(3):
            r = 12 + 4*(3*e+s3)
            p(f"ds_read_b64_tr_b16 {v(r, 2)}, {v(4+2*s3)} offset:{e*32}")
            p(f"ds_read_b64_tr_b16 {v(r+2, 2)}, {v(5+2*s3)} offset:{e*32}")
    for e in range(2):
        p(f"""
s_lshl_b32 s4, s13, 3
s_lshl_b32 s5, {S_WAVE}, 1
s_add_u32 s4, s4, s5
s_add_u32 s4, s4, {e}
s_mul_i32 s5, s4, 205
s_lshr_b32 s5, s5, 10
s_mul_i32 s6, s5, 5
s_sub_u32 s4, s4, s6
s_mul_i32 s4, s4, 12
s_lshl_b32 s5, s5, 2
s_lshr_b32 s6, s12, 2
s_add_u32 s5, s5, s6
s_mul_i32 s5, s5, 60
s_and_b32 s6, s12, 3
s_mul_i32 s6, s6, 3
s_add_u32 s5, s5, s6
s_add_u32 s5, s5, s4
s_lshl_b32 s5, s5, 10
s_add_u32 s5, s5, {WS_W2P}
""")
        for s3 in range(3):
            p(f"buffer_store_dwordx4 {v(12+4*(3*e+s3), 4)}, v10, {SRD_WS}, s5 offen offset:{s3*1024} {stflag}", tag='w2p')


KC_LDS, KC_CH, KC_COPY = 0, 16640, 4160
UC_LDS, UC_CH, UC_COPY, UC_PLANE = 66560, 10240, 5120, 1280
XC_LDS, XC_CH = 107520, 4096
TB_LDS, TB_W = 123904, 3072
CONV_LDS_END = TB_LDS + 4 * TB_W
STG_ROW = 800
LOG2E = 1.4426950408889634
INV2PI = 0.15915494309189535


class ConvRegs:
    def __init__(self):
        A = Alloc(2)
        self.t = A(6)
        self.x = A(16, 4)
        self.st = A(16, 4)
        self.dfrag = A(4, 4)
        self.aA = A()
        self.aB = A()
        self.aXr = A()
        self.aUw = A()
        self.aFix = A()
        self.aHw = A()
        self.aHr = A()
        self.aHg = A()
        self.aSt = A()
        self.aX = A(2)
        self.fl = A(4)
        self.base = A.n


def cmul(p, dsts, xs, es, tmps):
    for d, x, e, t in zip(dsts, xs, es, tmps):
        p(f"v_pk_mul_f32 {v(t, 2)}, {v(x, 2)}, {v(e, 2)} op_sel:[0,0] op_sel_hi:[0,1]")
    for d, x, e, t in zip(dsts, xs, es, tmps):
        p(f"v_pk_fma_f32 {v(d, 2)}, {v(x, 2)}, {v(e, 2)}, {v(t, 2)} op_sel:[1,1,0] op_sel_hi:[1,0,1] neg_lo:[0,1,0]")


def conv_loads(p, R, sq):
    A = Alloc(R.base)
    R.pd = A(6)
    R.ps = A(6)
    R.ldt = A()
    R.dsk = A()
    R.kbase = A.n
    t = R.t
    p(f"""
s_lshl_b32 s4, {sq}, 2
s_add_u32 s4, s4, {S_WAVE}
s_mul_i32 s5, s4, 384
v_lshl_add_u32 {v(t)}, {LANE}, 2, s5
v_lshl_add_u32 {v(t+1)}, {LANE}, 1, s5
s_lshl_b32 s4, s4, 1
v_mov_b32 {v(t+2)}, s4
global_load_ushort {v(R.ldt)}, {v(t+2)}, {P_LDT}
""")
    for i, P in enumerate((P_ARE, P_AIM, P_BRE, P_BIM, P_CRE, P_CIM)):
        p(f"global_load_dword {v(R.pd+i)}, {v(t)}, {P}")
        p(f"global_load_ushort {v(R.ps+i)}, {v(t+1)}, {P} offset:256")
    p(f"""
global_load_ushort {v(R.dsk)}, {v(t+2)}, {P_DSK}
s_mul_i32 s5, {S_WAVE}, {8*1280}
s_lshl_b32 s6, {sq}, 3
s_add_u32 s5, s5, s6
s_add_u32 s5, s5, {2*1280}
v_mul_u32_u24 {v(t+3)}, {32*1280}, {LANE}
v_add_u32 {v(R.aX)}, s5, {v(t+3)}
v_add_u32 {v(R.aX+1)}, {4*1280}, {v(R.aX)}
""")
    return [Ins(f"global_load_dwordx2 {v(R.x+2*i, 2)}, {v(R.aX+i//4)}, {P_X} offset:{(i%4-2)*1280}") for i in range(8)]


def conv_addresses(p, R, sq):
    t = R.t
    p(f"""
v_and_b32 {v(t)}, 15, {LANE}
v_lshrrev_b32 {v(t+1)}, 4, {LANE}
v_lshrrev_b32 {v(t+2)}, 2, {v(t)}
v_and_b32 {v(t+3)}, 3, {LANE}
s_mul_i32 s4, {S_WAVE}, {KC_CH}
v_sub_u32 {v(t+4)}, 3, {v(t+3)}
v_mul_u32_u24 {v(t+4)}, {KC_COPY}, {v(t+4)}
v_sub_u32 {v(t+5)}, {v(t+1)}, {v(t+2)}
v_add_u32 {v(t+5)}, 3, {v(t+5)}
v_lshl_add_u32 {v(t+4)}, {v(t+5)}, 4, {v(t+4)}
v_add_u32 {v(R.aA)}, s4, {v(t+4)}
s_mul_i32 s5, {S_WAVE}, {UC_CH}
s_add_u32 s5, s5, {UC_LDS}
v_mul_u32_u24 {v(t+4)}, {UC_PLANE}, {v(t+1)}
v_lshl_add_u32 {v(t+4)}, {v(t)}, 4, {v(t+4)}
v_add_u32 {v(R.aB)}, s5, {v(t+4)}
s_lshl_b32 s5, {S_WAVE}, 12
s_add_u32 s5, s5, {XC_LDS}
v_lshlrev_b32 {v(t+4)}, 10, {v(t+1)}
v_lshl_add_u32 {v(t+4)}, {v(t)}, 4, {v(t+4)}
v_add_u32 {v(R.aXr)}, s5, {v(t+4)}
s_mul_i32 s5, {S_WAVE}, {UC_PLANE}
s_add_u32 s5, s5, {UC_LDS + 256}
v_lshl_add_u32 {v(R.aUw)}, {LANE}, 4, s5
s_add_u32 s6, s5, {UC_PLANE}
s_cmp_eq_u32 {S_WAVE}, 3
s_cselect_b32 s6, {UC_LDS + 256 + 16}, s6
v_lshl_add_u32 {v(R.aFix)}, {LANE}, 4, s6
s_lshl_b32 s5, {S_WAVE}, 6
s_add_u32 s5, s5, s4
v_mul_u32_u24 {v(t+4)}, 528, {v(t+1)}
v_lshl_add_u32 {v(t+4)}, {v(t)}, 3, {v(t+4)}
v_add_u32 {v(R.aHw)}, s5, {v(t+4)}
v_mul_u32_u24 {v(t+4)}, {KC_CH + 64}, {v(t+2)}
v_mul_u32_u24 {v(t+5)}, 528, {v(t+3)}
v_add_u32 {v(t+4)}, {v(t+4)}, {v(t+5)}
v_lshl_add_u32 {v(t+4)}, {v(t+1)}, 3, {v(t+4)}
s_lshl_b32 s5, {S_WAVE}, 7
v_add_u32 {v(R.aHr)}, s5, {v(t+4)}
s_mul_i32 s5, {S_WAVE}, {16*40960}
s_lshl_b32 s6, {sq}, 7
s_add_u32 s5, s5, s6
s_add_u32 s5, s5, {WS_H}
v_lshrrev_b32 {v(t+4)}, 3, {LANE}
v_mul_u32_u24 {v(t+4)}, 20480, {v(t+4)}
v_and_b32 {v(t+5)}, 7, {LANE}
v_lshl_add_u32 {v(t+4)}, {v(t+5)}, 4, {v(t+4)}
v_add_u32 {v(R.aHg)}, s5, {v(t+4)}
s_lshl_b32 s5, {S_WAVE}, 10
s_add_u32 s5, s5, {WS_ST1}
v_lshl_add_u32 {v(R.aSt)}, {LANE}, 4, s5
""")
    z = R.st
    for k in range(4):
        p(f"v_mov_b32 {v(z+k)}, 0")
    p(f"ds_write_b128 {v(R.aB)}, {v(z, 4)}\nds_write_b128 {v(R.aB)}, {v(z, 4)} offset:{UC_COPY}")


def kgen(p, R, at_row=None, at_expand=None):
    A = Alloc(R.kbase)
    aW64, aW32, aFr, aT0, aT1, aT2, aG3, aK = [A() for _ in range(8)]
    aQ = A()
    pk = [A(4, 2), A(4, 2)]
    scratch = A(0, 4)
    E1, E16, E256, Q0, Q1, TM = [[A(2) for _ in range(3)] for _ in range(6)]
    P = {k: [A(2) for _ in range(3)] for k in range(2, 16, 2)}
    acc = A(12, 4)
    fB, fA = 0, 48
    t = R.t
    p(f"""
s_mul_i32 s4, {S_WAVE}, {KC_CH}
v_lshl_add_u32 {v(aW64)}, {LANE}, 3, s4
v_lshl_add_u32 {v(aK)}, {LANE}, 4, s4
s_add_u32 s5, s4, 512
v_lshl_add_u32 {v(aW32)}, {LANE}, 2, s5
v_and_b32 {v(t)}, 15, {LANE}
v_lshrrev_b32 {v(t+1)}, 4, {LANE}
v_mul_u32_u24 {v(t+2)}, {STG_ROW}, {v(t)}
v_lshl_add_u32 {v(t+2)}, {v(t+1)}, 4, {v(t+2)}
v_add_u32 {v(aFr)}, s4, {v(t+2)}
s_mul_i32 s5, {S_WAVE}, {TB_W}
s_add_u32 s5, s5, {TB_LDS}
v_lshlrev_b32 {v(t+2)}, 6, {v(t)}
v_lshl_add_u32 {v(t+2)}, {v(t+1)}, 4, {v(t+2)}
v_add_u32 {v(aT0)}, s5, {v(t+2)}
v_lshlrev_b32 {v(t+2)}, 5, {v(t)}
v_lshl_add_u32 {v(t+2)}, {v(t+1)}, 4, {v(t+2)}
v_lshlrev_b32 {v(t+3)}, 8, {v(t+1)}
v_lshl_add_u32 {v(t+4)}, {v(t)}, 4, {v(t+3)}
v_cmp_gt_u32 vcc, 32, {LANE}
v_cndmask_b32 {v(t+2)}, {v(t+4)}, {v(t+2)}, vcc
v_add_u32 {v(aT1)}, s5, {v(t+2)}
v_lshl_add_u32 {v(t+3)}, {v(t)}, 3, {v(t+3)}
v_add_u32 {v(aT2)}, s5, {v(t+3)}
v_sub_u32 {v(t+2)}, 63, {LANE}
v_lshl_add_u32 {v(aQ)}, {v(t+2)}, 2, s5
v_lshlrev_b32 {v(t+3)}, 5, {v(t+2)}
v_lshlrev_b32 {v(t+4)}, 4, {v(t+2)}
v_add_u32 {v(t+4)}, 512, {v(t+4)}
v_cndmask_b32 {v(t+3)}, {v(t+3)}, {v(t+4)}, vcc
v_add_u32 {v(aG3)}, s5, {v(t+3)}
""")
    dt = R.ldt
    p(f"""
v_lshlrev_b32 {v(dt)}, 16, {v(dt)}
v_mul_f32 {v(dt)}, {f32(LOG2E)}, {v(dt)}
v_exp_f32 {v(dt)}, {v(dt)}
v_cvt_pk_bf16_f32 {v(dt)}, {v(dt)}, {v(dt)}
v_and_b32 {v(dt)}, 0xffff0000, {v(dt)}
""")

    def unpack(dst3, i):
        p(f"v_lshlrev_b32 {v(dst3[0])}, 16, {v(R.pd+i)}")
        p(f"v_and_b32 {v(dst3[1])}, 0xffff0000, {v(R.pd+i)}")
        p(f"v_lshlrev_b32 {v(dst3[2])}, 16, {v(R.ps+i)}")
    Z = P[2]
    unpack(Z, 0)
    unpack([r+1 for r in Z], 1)
    for r in Z:
        p(f"v_mul_f32 {v(r)}, {v(dt)}, {v(r)}\nv_mul_f32 {v(r+1)}, {v(dt)}, {v(r+1)}")
    for r in Z:
        p(f"v_mul_f32 {v(r)}, {f32(LOG2E)}, {v(r)}\nv_mul_f32 {v(r+1)}, {f32(INV2PI)}, {v(r+1)}")
    for E, l in ((E16, 16.0), (E1, 1.0), (E256, 256.0)):
        M = P[4]
        for n in range(3):
            if l == 1.0:
                p(f"v_exp_f32 {v(M[n])}, {v(Z[n])}\nv_fract_f32 {v(M[n]+1)}, {v(Z[n]+1)}")
            else:
                p(f"v_mul_f32 {v(M[n])}, {f32(l)}, {v(Z[n])}\nv_mul_f32 {v(M[n]+1)}, {f32(l)}, {v(Z[n]+1)}")
        if l != 1.0:
            for n in range(3):
                p(f"v_exp_f32 {v(M[n])}, {v(M[n])}\nv_fract_f32 {v(M[n]+1)}, {v(M[n]+1)}")
        for n in range(3):
            p(f"v_cos_f32 {v(E[n])}, {v(M[n]+1)}\nv_sin_f32 {v(E[n]+1)}, {v(M[n]+1)}")
        for n in range(3):
            p(f"v_pk_mul_f32 {v(E[n], 2)}, {v(E[n], 2)}, {v(M[n], 2)} op_sel:[0,0] op_sel_hi:[1,0]")
    Bc, Cc = P[6], P[8]
    unpack(Bc, 2)
    unpack([r+1 for r in Bc], 3)
    unpack(Cc, 4)
    unpack([r+1 for r in Cc], 5)
    for r in Bc:
        p(f"v_mul_f32 {v(r)}, {v(dt)}, {v(r)}\nv_mul_f32 {v(r+1)}, {v(dt)}, {v(r+1)}")
    cmul(p, Q0, Cc, Bc, TM)

    cnt = [0]

    def put_row(row, src, neg=False):
        k = pk[cnt[0] & 1]
        cnt[0] += 1
        for n in range(3):
            p(f"v_cvt_pk_bf16_f32 {v(k+n)}, {v(src[n])}, {'-' if neg else ''}{v(src[n]+1)}")
        p(f"ds_write_b64 {v(aW64)}, {v(k, 2)} offset:{row*STG_ROW}")
        p(f"ds_write_b32 {v(aW32)}, {v(k+2)} offset:{row*STG_ROW}")
        p.add((at_row or {}).get(cnt[0], []))

    def read_frags(dst):
        for s in range(12):
            p(f"ds_read_b128 {a(dst+4*s, 4)}, {v(aFr)} offset:{s*64}")

    def mfmas(T):
        for s in range(12):
            c = '0' if s == 0 else v(acc+4*T, 4)
            p(f"v_mfma_f32_16x16x32_bf16 {v(acc+4*T, 4)}, {a(fA+4*s, 4)}, {a(fB+4*s, 4)}, {c}")

    cur, nxt = Q0, Q1
    put_row(0, cur, True)
    for c in range(1, 16):
        cmul(p, nxt, cur, E16, TM)
        put_row(c, nxt, True)
        cur, nxt = nxt, cur
    read_frags(fB)
    k = pk[cnt[0] & 1]
    cnt[0] += 1
    p(f"v_mov_b32 {v(k)}, 0x3f80\nv_mov_b32 {v(k+1)}, 0x3f80")
    p(f"ds_write_b64 {v(aW64)}, {v(k, 2)}\nds_write_b32 {v(aW32)}, {v(k)}")
    put_row(1, E1)
    cur = E1
    for c in range(2, 16):
        d = P[c] if c % 2 == 0 else Q0
        cmul(p, d, cur, E1, TM)
        put_row(c, d)
        cur = d
    read_frags(fA)
    G2, G3 = E1, E16
    cmul(p, G2, E256, E256, TM)
    cmul(p, G3, G2, E256, TM)
    put_row(0, E256)
    for e in range(1, 8):
        cmul(p, Q0, E256, P[2*e], TM)
        put_row(e, Q0)
        if e == 1:
            mfmas(0)
    for base, G in ((8, G2), (12, G3)):
        put_row(base, G)
        for e in range(1, 4):
            cmul(p, Q0, G, P[4*e], TM)
            put_row(base+e, Q0)
    read_frags(fA)
    cur, nxt = G3, G2
    for kk in range(4):
        cmul(p, nxt, cur, E256, TM)
        put_row(2*kk, nxt)
        cmul(p, Q0, nxt, P[8], TM)
        put_row(2*kk+1, Q0)
        cur, nxt = nxt, cur
        if kk == 0:
            mfmas(1)
    cmul(p, nxt, cur, E256, TM)
    put_row(8, nxt)
    read_frags(fA)
    p(f"ds_write_b128 {v(aT0)}, {v(acc, 4)}")
    p(f"ds_write_b128 {v(aT1)}, {v(acc+4, 4)} offset:1024")
    mfmas(2)
    p(f"ds_write_b64 {v(aT2)}, {v(acc+8, 2)} offset:2048")
    p(f"ds_write_b64 {v(aT2)}, {v(acc+10, 2)} offset:{2048+128}")

    g = scratch
    w = scratch + 16
    p(f"""
v_lshlrev_b32 {v(t+2)}, 2, {LANE}
v_sub_u32 {v(t+2)}, {v(aQ)}, {v(t+2)}
ds_read_b128 {v(g+8, 4)}, {v(aG3)}
ds_read_b128 {v(g+12, 4)}, {v(aG3)} offset:16
ds_read_b64 {v(g+4, 2)}, {v(t+2)} offset:{384*4 + 63*4}
ds_read_b32 {v(g+6)}, {v(t+2)} offset:{384*4 + 63*4 + 8}
ds_read_b32 {v(g+2)}, {v(aQ)} offset:{512*4}
ds_read_b32 {v(g+3)}, {v(aQ)} offset:{512*4 + 4}
ds_read_b32 {v(g)}, {v(aQ)} offset:{576*4}
ds_read_b32 {v(g+1)}, {v(aQ)} offset:{576*4 + 4}
v_and_b32 {v(t+3)}, 3, {LANE}
v_bfe_u32 {v(t+4)}, {LANE}, 2, 2
v_mul_u32_u24 {v(t+4)}, {KC_COPY}, {v(t+4)}
v_lshl_add_u32 {v(t+4)}, {v(t+3)}, 4, {v(t+4)}
v_add_u32 {v(t+4)}, s4, {v(t+4)}
ds_write_b128 {v(t+4)}, {v(R.st, 4)} offset:4096
""")
    cv = lambda d, lo, hi: p(f"v_cvt_pk_bf16_f32 {v(d)}, {v(lo)}, {v(hi)}")
    p.add(at_expand or [])
    p(f"v_and_b32 {v(t+3)}, 1, {LANE}\nv_cmp_eq_u32 vcc, 0, {v(t+3)}")
    k = g + 8
    d = w + 36
    for j, (lo, hi) in enumerate(((7, 6), (5, 4), (3, 2), (1, 0))):
        cv(d+j, k+lo, k+hi)
    p("s_mov_b32 exec_hi, 0")
    for j, (lo, hi) in enumerate(((4, 3), (2, 2), (2, 1), (0, 0))):
        cv(d+j, k+lo, k+hi)
    p("s_mov_b32 exec_hi, -1")
    p(f"ds_write_b128 {v(aK)}, {v(d, 4)} offset:3072")
    d = w + 24
    for j, (lo, hi) in enumerate(((6, 6), (5, 5), (5, 4), (4, 4))):
        cv(d+j, g+lo, g+hi)
    p(f"ds_write_b128 {v(aK)}, {v(d, 4)} offset:2048")
    for q in (1, 0):
        d = w + 12*q
        ra, rb = g + 2*q, g + 2*q + 1
        p(f"v_cndmask_b32 {v(t+3)}, {v(ra)}, {v(rb)}, vcc")
        cv(d, rb, rb)
        cv(d+2, ra, ra)
        cv(d+3, ra, ra)
        cv(d+1, rb, t+3)
        p(f"ds_write_b128 {v(aK)}, {v(d, 4)} offset:{1024*q}")
    for q in (3, 2, 1, 0):
        d = w + 12*q
        p(f"v_add_u32 {v(t+q)}, {1024*q}, {v(aK)}")
        p(f"ds_read_b64 {v(d+4, 2)}, {v(aK)} offset:{1024*q + 16}")
        for j in range(3):
            p(f"ds_read2_b32 {v(d+6+2*j, 2)}, {v(t+q)} offset0:{1+2*j} offset1:{2+2*j}")
    for q in (3, 2, 1, 0):
        d = w + 12*q
        p(f"ds_write_b128 {v(aK)}, {v(d+2, 4)} offset:{1024*q + 2*KC_COPY}")
        p(f"ds_write_b128 {v(aK)}, {v(d+6, 4)} offset:{1024*q + KC_COPY}")
        p(f"ds_write_b128 {v(aK)}, {v(d+8, 4)} offset:{1024*q + 3*KC_COPY}")
    p(f"""
v_lshlrev_b32 {v(R.dsk)}, 16, {v(R.dsk)}
v_and_b32 {v(t)}, 15, {LANE}
v_lshrrev_b32 {v(t+1)}, 4, {LANE}
v_lshlrev_b32 {v(t+1)}, 2, {v(t+1)}
v_sub_u32 {v(t)}, {v(t)}, {v(t+1)}
""")
    for j in range(4):
        p(f"v_cmp_eq_u32 s[{6+2*j}:{7+2*j}], {j}, {v(t)}")
    for j in range(4):
        p(f"v_cndmask_b32 {v(R.dfrag+j)}, 0, {v(R.dsk)}, s[{6+2*j}:{7+2*j}]")


def conv_xprep(p, R):
    A = Alloc(R.base)
    R.xf = A(32, 4)
    R.pk = A(32, 4)
    p("s_mov_b32 s4, 0x05040100\ns_mov_b32 s5, 0x07060302")
    p(f"s_lshl_b32 s6, {S_WAVE}, 10\ns_add_u32 s6, s6, {XC_LDS}\nv_lshl_add_u32 {v(R.t)}, {LANE}, 4, s6")
    for c in range(4):
        for j in range(4):
            lo, hi = R.x + 4*j + c//2, R.x + 4*j + 2 + c//2
            p(f"v_perm_b32 {v(R.pk+4*c+j)}, {v(hi)}, {v(lo)}, s{4 + (c & 1)}")
        p(f"ds_write_b128 {v(R.t)}, {v(R.pk+4*c, 4)} offset:{c*XC_CH}")
    for i in range(8):
        for hpair in range(2):
            p(f"v_lshlrev_b32 {v(R.xf+4*i+2*hpair)}, 16, {v(R.x+2*i+hpair)}")
            p(f"v_and_b32 {v(R.xf+4*i+2*hpair+1)}, 0xffff0000, {v(R.x+2*i+hpair)}")


def conv_stat_loads(p, R, ldflag):
    for k in range(4):
        p(f"s_mov_b32 s14, {k*4096}\nbuffer_load_dwordx4 {v(R.st+4*k, 4)}, {v(R.aSt)}, {SRD_WS}, s14 offen {ldflag}")


def conv_normalize(p, R):
    for i in range(8):
        for hpair in range(2):
            r = R.xf + 4*i + 2*hpair
            p(f"v_pk_fma_f32 {v(r, 2)}, {v(r, 2)}, {v(R.st+2*i, 2)}, {v(R.st+2*i, 2)} op_sel:[0,0,1] op_sel_hi:[1,0,1]")
    u = lambda i, c: v(R.xf + 4*i + c)
    for c in range(4):
        d = R.pk + 8*c
        for j in range(4):
            p(f"v_cvt_pk_bf16_f32 {v(d+j)}, {u(2*j, c)}, {u(2*j+1, c)}")
        p(f"ds_write_b128 {v(R.aUw)}, {v(d, 4)} offset:{c*UC_CH + UC_COPY}")
        for j in range(4):
            p(f"v_cvt_pk_bf16_f32 {v(d+4+j)}, {'0' if j == 0 else u(2*j-1, c)}, {u(2*j, c)}")
        p(f"ds_write_b128 {v(R.aUw)}, {v(d+4, 4)} offset:{c*UC_CH}")
    p("s_waitcnt lgkmcnt(0)\ns_barrier")
    for c in range(4):
        p(f"ds_write_b16_d16_hi {v(R.aFix)}, {v(R.pk+8*c+3)} offset:{c*UC_CH}")


def conv_main(p, R, stflag, extra=None):
    A = Alloc(R.base)
    acc = A(32, 4)
    xg = A(16, 4)
    A.n = max(A.n, R.pk + 32)
    buf = [A(48, 4), A(48, 4)]
    ac = lambda par, c: acc + 16*par + 4*c
    fa = lambda b, e: buf[b] + 4*e
    fb = lambda b, par, f: buf[b] + 16 + 16*par + 4*f

    def reads(dl, which='AB'):
        b = dl & 1
        L = []
        order = [('A', 0, 0), ('B', 1, 0), ('B', 0, 0), ('B', 1, 1), ('B', 0, 1), ('A', 1, 0), ('B', 1, 2), ('B', 0, 2),
                 ('A', 2, 0), ('B', 1, 3), ('B', 0, 3), ('A', 3, 0)]
        for kind, x, y in order:
            if kind not in which:
                continue
            if kind == 'A':
                L.append(Ins(f"ds_read_b128 {v(fa(b, x), 4)}, {v(R.aA)} offset:{(252 - 4*(dl + 16*x))*16}"))
            else:
                L.append(Ins(f"ds_read_b128 {v(fb(b, x, y), 4)}, {v(R.aB)} offset:{x*UC_COPY + (16 + 16*y - dl)*16}"))
        return L

    def mf(dl):
        b = dl & 1
        L = []
        chains = [(1, 0), (0, 0), (0, 1), (1, 1), (1, 2), (0, 2), (0, 3), (1, 3)]
        if dl & 1:
            chains.reverse()
        for par, c in chains:
            d = v(ac(par, c), 4)
            for e in range(c + 1):
                L.append(Ins(f"v_mfma_f32_16x16x32_bf16 {d}, {v(fa(b, e), 4)}, {v(fb(b, par, c-e), 4)}, {d}"))
            if dl == 0:
                L.append(Ins(f"v_mfma_f32_16x16x32_bf16 {d}, {v(R.dfrag, 4)}, {v(fb(b, par, c), 4)}, {d}"))
        return L

    for c in range(4):
        p(f"ds_read_b128 {v(xg+4*c, 4)}, {v(R.aXr)} offset:{c*256}")
    p.add(reads(0, 'A'))
    p("s_waitcnt lgkmcnt(0)\ns_barrier")
    p.add(reads(0, 'B'))
    for c in range(4):
        for r in range(4):
            p(f"v_lshlrev_b32 {v(ac(0, c)+r)}, 16, {v(xg+4*c+r)}")
            p(f"v_and_b32 {v(ac(1, c)+r)}, 0xffff0000, {v(xg+4*c+r)}")
    extra = extra or {}
    for dl in range(16):
        m = mf(dl)
        fixed = {i: [it] for i, it in enumerate(reads(dl+1) if dl < 15 else [])}
        for g, items in extra.get(dl, {}).items():
            fixed.setdefault(g, []).extend(items)
        if dl < 15:
            fixed.setdefault(len(m) - 1, []).append(Ins("s_waitcnt lgkmcnt(0)"))
        p.add(pack_gaps(m, fixed, [], 2))
    o = buf[0]
    for c in range(4):
        for par in (1, 0):
            d = o + 4*c + 2*par
            p(f"v_cvt_pk_bf16_f32 {v(d)}, {v(ac(par, c))}, {v(ac(par, c)+1)}")
            p(f"v_cvt_pk_bf16_f32 {v(d+1)}, {v(ac(par, c)+2)}, {v(ac(par, c)+3)}")
            p(f"ds_write_b64 {v(R.aHw)}, {v(d, 2)} offset:{par*2112 + c*128}")
    p("s_waitcnt lgkmcnt(0)\ns_barrier")
    o = buf[1]
    for it in range(4):
        for par in range(2):
            p(f"ds_read_b64_tr_b16 {v(o+4*it+2*par, 2)}, {v(R.aHr)} offset:{par*2112 + it*32}")
    for it in range(4):
        p(f"s_mov_b32 s4, {it*4*40960}")
        p(f"buffer_store_dwordx4 {v(o+4*it, 4)}, {v(R.aHg)}, {SRD_WS}, s4 offen {stflag}", tag='hst')


S_RB, S_CB, S_SG, S_DT = 's64', 's65', 's66', 's67'


def ffn_coords(p):
    p(f"""
s_bfe_u32 s4, s2, 0x10002
s_lshl_b32 s4, s4, 3
s_lshr_b32 s5, s2, 5
s_add_u32 {S_RB}, s4, s5
s_bfe_u32 s5, s2, 0x20003
s_and_b32 s4, s2, 3
s_lshl_b32 s4, s4, 2
s_add_u32 {S_CB}, s4, s5
s_and_b32 {S_SG}, s2, 1
s_and_b32 s4, s2, 2
s_lshl_b32 s4, s4, 1
s_add_u32 {S_DT}, s4, s5
""")


H16_SLOT = 20480
H16_NSLOT = 7
S2_LDS = H16_NSLOT * H16_SLOT
WX_LDS = S2_LDS + 256
G16_LDS_END = WX_LDS + 4*3072


def stats2_loads(p, r0, ldflag):
    t = r0 + 12
    p(f"""
s_lshl_b32 s4, {S_RB}, 3
s_lshr_b32 s5, {S_CB}, 1
s_add_u32 s4, s4, s5
s_mul_i32 s4, s4, 20480
s_and_b32 s5, {S_CB}, 1
s_lshl_b32 s5, s5, 6
s_add_u32 s4, s4, s5
s_mul_i32 s5, {S_WAVE}, 5120
s_add_u32 s4, s4, s5
s_add_u32 s4, s4, {WS_H}
v_lshrrev_b32 {v(t)}, 2, {LANE}
v_lshlrev_b32 {v(t)}, 7, {v(t)}
v_and_b32 {v(t+1)}, 3, {LANE}
v_lshl_add_u32 {v(t)}, {v(t+1)}, 4, {v(t)}
v_add_u32 {v(t)}, s4, {v(t)}
v_add_u32 {v(t+1)}, 2048, {v(t)}
v_add_u32 {v(t+2)}, 4096, {v(t)}
v_mov_b32 {v(t+3)}, {OOB}
v_cmp_gt_u32 vcc, 32, {LANE}
v_cndmask_b32 {v(t+2)}, {v(t+3)}, {v(t+2)}, vcc
""")
    return [Ins(f"buffer_load_dwordx4 {v(r0+4*k, 4)}, {v(t+k)}, {SRD_WS}, 0 offen {ldflag}") for k in range(3)]


def stats2_partial(p, r0):
    t = r0 + 12
    p("s_mov_b32 s4, 0x3f803f80")
    for k in range(4):
        p(f"v_mov_b32 {v(t+k)}, 0")
    for k in range(3):
        for j in range(4):
            e = j >> 1
            p(f"v_dot2c_f32_bf16 {v(t+2*e)}, s4, {v(r0+4*k+j)}")
            p(f"v_dot2c_f32_bf16 {v(t+2*e+1)}, {v(r0+4*k+j)}, {v(r0+4*k+j)}")
    p(f"""
v_permlane32_swap_b32 {v(t)}, {v(t+2)}
v_permlane32_swap_b32 {v(t+1)}, {v(t+3)}
v_add_f32 {v(t)}, {v(t)}, {v(t+2)}
v_add_f32 {v(t+1)}, {v(t+1)}, {v(t+3)}
v_and_b32 {v(t+4)}, 3, {LANE}
v_lshrrev_b32 {v(t+5)}, 4, {LANE}
v_permlane16_swap_b32 {v(t)}, {v(t+1)}
v_lshl_add_u32 {v(t+4)}, {v(t+4)}, 2, {v(t+5)}
v_add_f32 {v(t)}, {v(t)}, {v(t+1)}
s_lshl_b32 s4, {S_WAVE}, 2
s_add_u32 s4, s4, {S2_LDS}
v_add_f32_dpp {v(t)}, {v(t)}, {v(t)} row_ror:4 row_mask:0xf bank_mask:0xf
v_lshl_add_u32 {v(t+4)}, {v(t+4)}, 4, s4
v_add_f32_dpp {v(t)}, {v(t)}, {v(t)} row_ror:8 row_mask:0xf bank_mask:0xf
ds_write_b32 {v(t+4)}, {v(t)}
""")


def stats2_final_addr(p, r0):
    p(f"""
v_and_b32 {v(r0+18)}, 7, {LANE}
v_lshlrev_b32 {v(r0+19)}, 5, {v(r0+18)}
v_add_u32 {v(r0+19)}, {S2_LDS}, {v(r0+19)}
v_lshl_add_u32 {v(r0+18)}, {v(r0+18)}, 4, s79
v_mov_b32 {v(r0+17)}, {OOB}
s_cmp_eq_u32 {S_WAVE}, 0
s_cselect_b32 s4, 8, 0
v_cmp_gt_u32 vcc, s4, {LANE}
v_cndmask_b32 {v(r0+18)}, {v(r0+17)}, {v(r0+18)}, vcc
""")


def stats2_final(p, r0, stflag):
    p(f"""
ds_read_b128 {v(r0, 4)}, {v(r0+19)}
ds_read_b128 {v(r0+4, 4)}, {v(r0+19)} offset:16
v_add_f32 {v(r0)}, {v(r0)}, {v(r0+1)}
v_add_f32 {v(r0+2)}, {v(r0+2)}, {v(r0+3)}
v_add_f32 {v(r0+4)}, {v(r0+4)}, {v(r0+5)}
v_add_f32 {v(r0+6)}, {v(r0+6)}, {v(r0+7)}
v_add_f32 {v(r0)}, {v(r0)}, {v(r0+2)}
v_add_f32 {v(r0+4)}, {v(r0+4)}, {v(r0+6)}
""")
    ln_finalize(p, r0, r0+4, r0+1, r0+3, r0+2)
    p(f"v_xor_b32 {v(r0+3)}, 0x80000000, {v(r0+3)}")
    p(f"buffer_store_dwordx2 {v(r0+2, 2)}, {v(r0+18)}, {SRD_WS}, 0 offen {stflag}", tag='st2')


def w_loads(base_sgpr, vaddr, idx, dst, ldflag, tag, first=False):
    L = []
    if idx % 4 == 0 or first:
        L.append(Ins(f"s_add_u32 s{base_sgpr+1}, s{base_sgpr}, {idx//4*4096}"))
    L.append(Ins(f"buffer_load_dwordx4 {dst}, {v(vaddr)}, {SRD_WS}, s{base_sgpr+1} offen offset:{(idx%4)*1024} {ldflag}", tag))
    return L


def w_bases(p):
    p(f"""
s_lshl_b32 s6, {S_CB}, 2
s_add_u32 s6, s6, {S_WAVE}
s_mul_i32 s68, s6, 61440
s_add_u32 s68, s68, {WS_W1P}
s_lshl_b32 s6, {S_DT}, 2
s_add_u32 s6, s6, {S_WAVE}
s_mul_i32 s70, s6, 61440
s_add_u32 s70, s70, {WS_W2P}
""")


GC1 = -2.0 * 0.7978845608028654 * LOG2E
GC2 = GC1 * 0.044715


def slots(i):
    return 2 if (i.kind == 'valu' and i.trans) else (0 if i.kind in ('wait_vm', 'flush') else 1)


def pack_gaps(main, fixed, queue, cap, tail_extra=None, tail_every=4):
    out, j = [], 0
    for g, m in enumerate(main):
        out.append(m)
        used = 0
        for it in fixed.get(g, []):
            out.append(it)
            used += slots(it)
        while j < len(queue) and queue[j][0] <= g and used + slots(queue[j][1]) <= cap:
            out.append(queue[j][1])
            used += slots(queue[j][1])
            j += 1
    extra = list(tail_extra or [])
    for n, q in enumerate(queue[j:]):
        out.append(q[1])
        if extra and n % tail_every == tail_every - 1:
            out += extra.pop(0)
    for grp in extra:
        out += grp
    return out


def diag_tail(p):
    if DIAG is None:
        return
    p("""
s_mul_i32 s99, s99, 10
s_add_u32 s99, s99, 6000
L_diag:
s_memrealtime s[96:97]
s_waitcnt lgkmcnt(0)
s_sub_u32 s96, s96, s94
s_cmp_lt_u32 s96, s99
s_cbranch_scc1 L_diag
""")


class G16Regs:
    def __init__(self, nacc=4):
        A = Alloc(2)
        self.aL16 = A()
        self.aHr = [A(), A()]
        self.aG = A()
        self.aSt = A()
        self.aCf = A()
        self.cfv = A()
        self.aPoll = A()
        self.pv = A()
        self.nacc = nacc
        self.acc = [A(12, 4) for _ in range(nacc)]
        self.cs = A(12, 4)
        self.fr = [A(16, 4), A(16, 4)]
        self.st = A(16, 2)
        self.k = A(4, 2)
        self.t = A(8, 4)
        self.o = A(4, 4)
        self.end = A.n


def g16_epilogue(R, tt, stflag):
    A = R.acc[tt % R.nacc]
    P = Prog()
    sd, nm = R.st + 2*tt, R.st + 2*tt + 1
    k1, k2, s2 = R.k, R.k + 1, R.k + 2
    G = [A + 4*tau + j for tau in range(3) for j in range(2)]
    U = [g + 2 for g in G]
    CG = [R.cs + 4*tau + j for tau in range(3) for j in range(2)]
    T = [R.t + i for i in range(6)]
    P(f"v_rcp_f32 {v(k1)}, {v(sd)}")
    P(f"v_mul_f32 {v(s2)}, {v(sd)}, {v(sd)}")
    for i in range(6):
        P(f"v_fma_f32 {v(G[i])}, {v(nm)}, {v(CG[i])}, {v(G[i])}")
    P(f"v_mul_f32 {v(k2)}, {v(k1)}, {v(k1)}")
    P(f"v_mul_f32 {v(k1)}, {f32(GC1)}, {v(k1)}")
    P(f"v_mul_f32 {v(k2)}, {f32(0.044715)}, {v(k2)}")
    for i in range(6):
        P(f"v_mul_f32 {v(T[i])}, {v(G[i])}, {v(G[i])}")
    P(f"v_mul_f32 {v(k2)}, {v(k2)}, {v(k1)}")
    for i in range(6):
        P(f"v_fma_f32 {v(U[i])}, {v(nm)}, {v(CG[i]+2)}, {v(U[i])}")
    for i in range(6):
        P(f"v_fma_f32 {v(T[i])}, {v(T[i])}, {v(k2)}, {v(k1)}")
    for i in range(6):
        P(f"v_mul_f32 {v(T[i])}, {v(T[i])}, {v(G[i])}")
    for i in range(6):
        P(f"v_exp_f32 {v(T[i])}, {v(T[i])}")
    for i in range(6):
        P(f"v_mul_f32 {v(G[i])}, {v(G[i])}, {v(U[i])}")
    for i in range(6):
        P(f"v_fma_f32 {v(T[i])}, {v(T[i])}, {v(s2)}, {v(s2)}")
    for i in range(6):
        P(f"v_rcp_f32 {v(T[i])}, {v(T[i])}")
    for i in range(6):
        P(f"v_mul_f32 {v(G[i])}, {v(G[i])}, {v(T[i])}")
    for tau in range(3):
        P(f"v_cvt_pk_bf16_f32 {v(T[tau])}, {v(G[2*tau])}, {v(G[2*tau+1])}")
    for tau in range(3):
        P(f"v_cvt_pk_bf16_f32 {v(R.o+tau)}, {v(G[2*tau])}, {v(G[2*tau+1])}")
    P(f"v_permlane16_swap_b32 {v(T[0])}, {v(T[1])}")
    P(f"v_permlane16_swap_b32 {v(T[2])}, {v(R.o+3)}")
    P(f"s_mov_b32 s75, {tt*49152}")
    P(f"v_permlane32_swap_b32 {v(T[1])}, {v(R.o+3)}")
    P(f"buffer_store_dwordx4 {v(R.o, 4)}, {v(R.aG)}, {SRD_WS}, s75 offen {stflag}", tag=f'g{tt}')
    return P.items


def g16_dma(R, tt, ldflag):
    L = []
    for i in range(5):
        grp = []
        if i % 4 == 0:
            grp.append(Ins(f"s_add_u32 m0, s73, {(tt % H16_NSLOT)*H16_SLOT + i*1024}"))
            grp.append(Ins(f"s_add_u32 s74, s72, {tt*H16_SLOT + i*1024}"))
        grp.append(Ins(f"buffer_load_dwordx4 {v(R.aL16)}, {SRD_WS}, s74 offen offset:{(i%4)*1024} {ldflag} lds", f'h{tt}'))
        L.append(grp)
    return L


def g16_main(p, R, stflag, lag=1, hooks=None, cap=2):
    hooks = hooks or {}

    def hread(gg, i):
        tt, gr = divmod(gg, 5)
        off = (tt % H16_NSLOT)*H16_SLOT + (4*gr + i)*1024
        b, o = divmod(off, 4*H16_SLOT)
        return Ins(f"ds_read2st64_b64 {v(R.fr[gg & 1]+4*i, 4)}, {v(R.aHr[b])} offset0:{o//512} offset1:{o//512+1}")

    def wv(tag):
        q = Prog()
        q.wait_vm(tag)
        return q.items[0]

    p.wait_vm('h0')
    p("s_waitcnt lgkmcnt(0)\ns_barrier")
    p.add([hread(0, i) for i in range(4)])
    main, fixed, queue = [], {}, list(hooks.get('pre', []))
    for gg in range(40):
        tt, gr = divmod(gg, 5)
        A = R.acc[tt % R.nacc]
        for tau in range(3):
            for i in range(4):
                s = 4*gr + i
                d = v(A+4*tau, 4)
                main.append(Ins(f"v_mfma_f32_16x16x32_bf16 {d}, {a(12*s+4*tau, 4)}, {v(R.fr[gg & 1]+4*i, 4)}, {'0' if s == 0 else d}"))
        if gg + 1 < 40:
            for i in range(4):
                fixed.setdefault(12*gg + 1 + 2*i, []).append(hread(gg+1, i))
            fixed.setdefault(12*gg + 11, []).append(Ins("s_waitcnt lgkmcnt(0)"))
        if gr == 3 and tt + 1 < 8:
            fixed.setdefault(12*gg + 10, []).extend([wv(f'h{tt+1}'), Ins("s_barrier")])
    for tt in range(8):
        epi = g16_epilogue(R, tt, stflag)
        if ('in_epi', tt) in hooks:
            pos, extra = hooks[('in_epi', tt)]
            epi = epi[:pos] + extra + epi[pos:]
        queue += [(60*max(tt + 1, lag) + 2, it) for it in epi]
    for g, items in hooks.get('fixed', {}).items():
        fixed.setdefault(g, []).extend(items)
    p.add(pack_gaps(main, fixed, queue, cap, hooks.get('tail'), hooks.get('tail_every', 12)))


def g16_setup(p, R):
    t = R.t
    p(f"""
v_lshlrev_b32 {v(R.aL16)}, 4, {LANE}
v_lshlrev_b32 {v(R.aHr[0])}, 3, {LANE}
v_add_u32 {v(R.aHr[1])}, {4*H16_SLOT}, {v(R.aHr[0])}
s_mul_i32 s5, {S_RB}, {8*49152}
s_lshl_b32 s6, {S_CB}, 2
s_add_u32 s6, s6, {S_WAVE}
s_mul_i32 s7, s6, 768
s_add_u32 s5, s5, s7
s_add_u32 s5, s5, {WS_G}
v_add_u32 {v(t)}, s5, {v(R.aL16)}
v_mov_b32 {v(t+1)}, {OOB}
v_cmp_gt_u32 vcc, 48, {LANE}
v_cndmask_b32 {v(R.aG)}, {v(t+1)}, {v(t)}, vcc
s_mul_i32 s72, {S_RB}, {8*H16_SLOT}
s_mul_i32 s73, {S_WAVE}, 5120
s_add_u32 s72, s72, s73
s_add_u32 s72, s72, {WS_H}
s_lshl_b32 s4, {S_RB}, 10
s_add_u32 s4, s4, {WS_ST2}
v_and_b32 {v(t)}, 15, {LANE}
v_lshl_add_u32 {v(R.aSt)}, {v(t)}, 4, s4
s_lshr_b32 s5, {S_CB}, 2
s_lshl_b32 s5, s5, 8
s_add_u32 s79, s4, s5
s_and_b32 s5, {S_CB}, 1
s_lshl_b32 s5, s5, 7
s_add_u32 s79, s79, s5
s_and_b32 s5, {S_CB}, 2
s_lshl_b32 s5, s5, 2
s_add_u32 s79, s79, s5
s_lshl_b32 s4, {S_RB}, 4
s_add_u32 s4, s4, {S_CB}
s_lshl_b32 s4, s4, 7
s_lshl_b32 s5, {S_WAVE}, 2
s_add_u32 s4, s4, s5
s_add_u32 s4, s4, {WS_CF}
v_mov_b32 {v(t)}, s4
v_cmp_eq_u32 vcc, 0, {LANE}
v_cndmask_b32 {v(R.aCf)}, {v(t+1)}, {v(t)}, vcc
s_lshl_b32 s4, {S_RB}, 2
s_add_u32 s4, s4, {S_WAVE}
s_lshl_b32 s4, s4, 9
s_add_u32 s4, s4, {WS_CF}
v_bfe_u32 {v(t)}, {LANE}, 2, 2
v_lshlrev_b32 {v(t)}, 7, {v(t)}
v_and_b32 {v(t+1)}, 3, {LANE}
v_lshl_add_u32 {v(t)}, {v(t+1)}, 2, {v(t)}
v_add_u32 {v(R.aPoll)}, s4, {v(t)}
s_lshl_b32 s4, {S_RB}, 3
s_add_u32 s4, s4, {S_SG}
s_mul_i32 s76, s4, 49152
s_mul_i32 s5, {S_WAVE}, 12288
s_add_u32 s76, s76, s5
s_add_u32 s76, s76, {WS_G}
s_mul_i32 s91, {S_WAVE}, 3072
s_add_u32 s4, s73, {H16_SLOT}
v_add_u32 v136, s4, {v(R.aL16)}
v_add_u32 v137, {3*H16_SLOT}, v136
s_add_u32 s4, s91, {WX_LDS}
v_add_u32 v138, s4, {v(R.aL16)}
s_mul_i32 s4, s6, 192
s_add_u32 s4, s4, {WS_CS}
v_lshrrev_b32 {v(t)}, 4, {LANE}
v_lshl_add_u32 {v(t)}, {v(t)}, 4, s4
""")


def g16_cs(p, R, ldflag):
    for kq in range(4):
        p(f"s_mov_b32 s4, {kq*192*64}")
        for tau in range(3):
            p(f"buffer_load_dwordx4 {v(R.acc[kq]+4*tau, 4)}, {v(R.t)}, {SRD_WS}, s4 offen offset:{tau*64} {ldflag}")


def g16_cs_sum(p, R):
    for i in range(0, 12, 2):
        p(f"v_pk_add_f32 {v(R.cs+i, 2)}, {v(R.acc[0]+i, 2)}, {v(R.acc[1]+i, 2)}")
        p(f"v_pk_add_f32 {v(R.acc[2]+i, 2)}, {v(R.acc[2]+i, 2)}, {v(R.acc[3]+i, 2)}")
    for i in range(0, 12, 2):
        p(f"v_pk_add_f32 {v(R.cs+i, 2)}, {v(R.cs+i, 2)}, {v(R.acc[2]+i, 2)}")


def g16_stat_loads(R, ldflag):
    return [Ins(f"buffer_load_dwordx4 {v(R.st+4*k, 4)}, {v(R.aSt)}, {SRD_WS}, 0 offen offset:{k*256} {ldflag}") for k in range(4)]


RED_G, RED_D, RED_W, RED_SLOT = 288, 1152, 5760, 23040
RED_LDS = H16_SLOT
W2V0, W2_NV = 140, 28
W2_EARLY = W2_NV + 4


def w2_reg(idx):
    if idx < W2_NV:
        return v(W2V0 + 4*idx, 4)
    if idx < W2_EARLY:
        return a(240 + 4*(idx - W2_NV), 4)
    return a(48 + 4*(idx - W2_EARLY), 4)


def w2_stage(k):
    if k < 3:
        return 0, 's91', WX_LDS + k*1024
    slot, i = divmod(k - 3, 5)
    return 60*(slot + 2) + 48, 's73', (slot + 1)*H16_SLOT + i*1024


def w2_stage_dma(k, vaddr, ldflag):
    _, base, off = w2_stage(k)
    i = k if k < 3 else (k - 3) % 5
    L = []
    if i % 4 == 0:
        L.append(Ins(f"s_add_u32 m0, {base}, {off}"))
        L.append(Ins(f"s_add_u32 s71, s70, {(W2_EARLY + k)*1024}"))
    L.append(Ins(f"buffer_load_dwordx4 {v(vaddr)}, {SRD_WS}, s71 offen offset:{(i % 4)*1024} {ldflag} lds", 'w2s'))
    return L


def w2_stage_read(R, k):
    _, base, off = w2_stage(k)
    if k < 3:
        return Ins(f"ds_read_b128 {w2_reg(W2_EARLY + k)}, {v(R.aS[2])} offset:{k*1024}")
    b, o = divmod(off - H16_SLOT, 3*H16_SLOT)
    return Ins(f"ds_read_b128 {w2_reg(W2_EARLY + k)}, {v(R.aS[b])} offset:{o}")


class G2Regs:
    def __init__(self, G1):
        self.aL16 = G1.aL16
        A = Alloc(G1.acc[0], limit=W2V0)
        self.acc = [A(20, 4), A(20, 4)]
        self.pt = A(32, 4)
        self.res = A(16, 4)
        self.o = A(4, 4)
        self.t = A(4, 4)
        self.gx = A(16, 4)
        self.aRw = A()
        self.aRr = A()
        self.aHres = A()
        self.aOut = A()
        self.aS = [136, 137, 138]

    def g(self, tt, s):
        b = tt % 3
        if b == 0:
            return a(4*s, 4)
        if b == 1:
            return a(160 + 4*s, 4)
        return a(208 + 4*s, 4) if s < 8 else v(self.gx + 4*(s-8), 4)


def g2_setup(p, R):
    t = R.t
    p(f"""
s_mul_i32 s4, {S_WAVE}, {RED_W}
s_add_u32 s4, s4, {RED_LDS}
v_lshrrev_b32 {v(t)}, 4, {LANE}
v_mul_u32_u24 {v(t)}, {RED_G}, {v(t)}
v_and_b32 {v(t+1)}, 15, {LANE}
v_lshl_add_u32 {v(t)}, {v(t+1)}, 4, {v(t)}
v_add_u32 {v(R.aRw)}, s4, {v(t)}
v_lshrrev_b32 {v(t)}, 2, {LANE}
v_min_u32 {v(t)}, 9, {v(t)}
v_and_b32 {v(t+1)}, 3, {LANE}
s_lshl_b32 s4, {S_WAVE}, 2
v_add_u32 {v(t+1)}, s4, {v(t+1)}
v_mul_u32_u24 {v(t+2)}, {2*RED_G}, {v(t)}
v_lshl_add_u32 {v(t+2)}, {v(t+1)}, 4, {v(t+2)}
v_add_u32 {v(R.aRr)}, {RED_LDS}, {v(t+2)}
s_lshl_b32 s4, {S_RB}, 3
s_add_u32 s4, s4, {S_SG}
s_mul_i32 s6, s4, {H16_SLOT}
s_mul_i32 s5, {S_DT}, {20*128}
s_add_u32 s5, s5, s6
s_add_u32 s5, s5, {WS_H}
v_lshlrev_b32 {v(t+2)}, 8, {v(t)}
v_lshl_add_u32 {v(t+2)}, {v(t+1)}, 3, {v(t+2)}
v_add_u32 {v(R.aHres)}, s5, {v(t+2)}
s_mul_i32 s5, {S_DT}, 160
s_add_u32 s5, s5, s6
v_mul_u32_u24 {v(t+2)}, 1280, {v(t+1)}
v_lshl_add_u32 {v(t+2)}, {v(t)}, 4, {v(t+2)}
v_add_u32 {v(t+2)}, s5, {v(t+2)}
v_mov_b32 {v(t+3)}, {OOB}
v_cmp_gt_u32 s[8:9], 40, {LANE}
v_cndmask_b32 {v(R.aOut)}, {v(t+3)}, {v(t+2)}, s[8:9]
""")


def g2_res_loads(R, tt, ldflag):
    return [Ins(f"s_mov_b32 s88, {tt*40960}")] + [
        Ins(f"buffer_load_dwordx2 {v(R.res+4*tt+2*k, 2)}, {v(R.aHres)}, {SRD_WS}, s88 offen offset:{k*128} {ldflag}") for k in range(2)]


def g2_gloads(R, tt, ldflag):
    L = []
    for s in range(12):
        grp = []
        if s % 4 == 0:
            grp.append(Ins(f"s_add_u32 s77, s76, {tt*2*49152 + s*1024}"))
        grp.append(Ins(f"buffer_load_dwordx4 {R.g(tt, s)}, {v(R.aL16)}, {SRD_WS}, s77 offen offset:{(s%4)*1024} {ldflag}"))
        L.append(grp)
    return L


def g2_send(R, tt, d):
    return Ins(f"ds_write_b128 {v(R.aRw)}, {v(R.acc[tt & 1]+4*d, 4)} offset:{(tt & 1)*RED_SLOT + d*RED_D}")


def g2_final(R, tt, outflag, packed=False):
    P = Prog()
    for w in range(4):
        for k in range(2):
            P(f"ds_read_b128 {v(R.pt+8*w+4*k, 4)}, {v(R.aRr)} offset:{(tt & 1)*RED_SLOT + w*RED_W + k*RED_G}")

    def add8(d, x):
        if packed:
            for j in range(0, 8, 2):
                P(f"v_pk_add_f32 {v(d+j, 2)}, {v(d+j, 2)}, {v(x+j, 2)}")
        else:
            for j in range(8):
                P(f"v_add_f32 {v(d+j)}, {v(d+j)}, {v(x+j)}")
    add8(R.pt, R.pt+8)
    for j in range(4):
        P(f"v_lshlrev_b32 {v(R.pt+8+2*j)}, 16, {v(R.res+4*tt+j)}")
        P(f"v_and_b32 {v(R.pt+8+2*j+1)}, 0xffff0000, {v(R.res+4*tt+j)}")
    add8(R.pt+16, R.pt+24)
    add8(R.pt, R.pt+8)
    add8(R.pt, R.pt+16)
    for j in range(4):
        P(f"v_cvt_pk_bf16_f32 {v(R.o+j)}, {v(R.pt+2*j)}, {v(R.pt+2*j+1)}")
    P(f"s_mov_b32 s78, {tt*32*1280}")
    P(f"buffer_store_dwordx4 {v(R.o, 4)}, {v(R.aOut)}, {SRD_OUT}, s78 offen {outflag}")
    return P.items


def g2_main(p, R, outflag, hooks):
    for tt in range(4):
        main, fixed, queue = [], {}, list(hooks.get(('queue', tt), []))
        for d in range(5):
            c = v(R.acc[tt & 1]+4*d, 4)
            for s in range(12):
                main.append(Ins(f"v_mfma_f32_16x16x32_bf16 {c}, {w2_reg(12*d+s)}, {R.g(tt, s)}, {'0' if s == 0 else c}"))
            if d < 4:
                fixed.setdefault((38, 44, 50, 56)[d] if tt == 0 else 12*d + 19, []).append(g2_send(R, tt, d))
        if tt >= 1:
            fixed.setdefault(6, []).append(g2_send(R, tt-1, 4))
            fixed.setdefault(11, []).extend([Ins("s_waitcnt lgkmcnt(0)"), Ins("s_barrier")])
            queue += [(12, it) for it in g2_final(R, tt-1, outflag)]
        for g, items in hooks.get(('fixed', tt), {}).items():
            fixed.setdefault(g, []).extend(items)
        p.add(hooks.get(('before', tt), []))
        p.add(pack_gaps(main, fixed, queue, 2))
        stamp(p, 23 + tt)
    p.add([g2_send(R, 3, 4)])
    p("s_waitcnt lgkmcnt(0)\ns_barrier")
    p.add(g2_final(R, 3, outflag, packed=True))
```

```python
import sys, os
import phases
phases.STAMPS = bool(os.environ.get('STAMPS'))
phases.DIAG = int(os.environ['DIAG']) if os.environ.get('DIAG') else None
from phases import *

NAME = 'sequential_preLN__ssm_conv_s4__geglu_ffn__prompt'
REF = open(f'cdna_kernels/{NAME}.s.ref').read()
HEAD = ''.join(l + '\n' for l in REF.split('\n') if l.startswith(';') and '@launch' not in l)
LDS = max(G16_LDS_END, CONV_LDS_END)
OPT = dict(kv.split('=') for kv in os.environ.get('OPT', '').split(',') if kv)
opt = lambda k, d: type(d)(OPT.get(k, d))
SPIN_MAX = 1 << 18
_uid = [0]


def spin(p, loads, cond, sleep=2):
    _uid[0] += 1
    L = f'L_spin{_uid[0]}'
    p(f"s_mov_b32 s90, 0\n{L}:")
    p(loads)
    p("s_waitcnt vmcnt(0)")
    p(cond)
    p(f"""
s_nop 4
s_cbranch_vccz {L}_done
s_sleep {sleep}
s_add_u32 s90, s90, 1
s_cmp_lt_u32 s90, {SPIN_MAX}
s_cbranch_scc1 {L}
{L}_done:
""")


def check_or_spin(loads, cond, sleep=2):
    _uid[0] += 1
    L = f'L_ok{_uid[0]}'
    q = Prog()
    q(cond + f"\ns_nop 4\ns_cbranch_vccz {L}")
    n = len(q.items)
    spin(q, loads, cond, sleep)
    for it in q.items[n:]:
        if it.op == 's_waitcnt':
            it.op = 's_waitcnt_untracked'
        if it.kind == 'vm':
            it.kind = 'other'
    q(f"{L}:")
    return q.items


def items(text, tag=None):
    return Prog()(text, tag).items


def init_flag_poll(t):
    return (f"v_lshlrev_b32 {v(t)}, 2, {LANE}",
            f"buffer_load_dword {v(t+1)}, {v(t)}, {SRD_DBG}, 0 offen sc1",
            f"v_cmp_eq_u32 vcc, 0, {v(t+1)}")


def pack_flag_poll(t, which):
    if which == 1:
        setup = f"""
s_mul_i32 s4, {S_CB}, 3
s_lshr_b32 s4, s4, 1
s_lshl_b32 s4, s4, 9
s_add_u32 s4, s4, {WS_FLAG + 160*128}
v_and_b32 {v(t)}, 7, {LANE}
v_lshl_add_u32 {v(t)}, {v(t)}, 7, s4
"""
    else:
        setup = f"""
s_mul_i32 s4, {S_DT}, 5
s_lshr_b32 s4, s4, 3
s_min_u32 s4, s4, 3
s_mul_i32 s5, {S_WAVE}, 20
s_add_u32 s4, s4, s5
s_lshl_b32 s4, s4, 7
s_add_u32 s4, s4, {WS_FLAG + 160*128}
v_bfe_u32 {v(t)}, {LANE}, 1, 2
v_mul_u32_u24 {v(t)}, 5, {v(t)}
v_and_b32 {v(t+1)}, 1, {LANE}
v_add_u32 {v(t)}, {v(t)}, {v(t+1)}
v_lshl_add_u32 {v(t)}, {v(t)}, 7, s4
"""
    return (setup, f"buffer_load_dword {v(t+1)}, {v(t)}, {SRD_WS}, 0 offen sc1", f"v_cmp_gt_u32 vcc, {which}, {v(t+1)}")


def blocking(p, poll, sleep=4):
    p(poll[0])
    spin(p, poll[1], poll[2], sleep)


def publish_wg_flag(p, t, value):
    p(f"""
s_barrier
s_lshl_b32 s4, s2, 7
s_add_u32 s4, s4, {WS_FLAG}
s_cmp_eq_u32 {S_WAVE}, 0
s_cselect_b32 s5, 1, 0
v_mov_b32 {v(t)}, s4
v_mov_b32 {v(t+1)}, {OOB}
v_cmp_gt_u32 vcc, s5, {LANE}
v_cndmask_b32 {v(t)}, {v(t+1)}, {v(t)}, vcc
v_mov_b32 {v(t+1)}, {value}
buffer_store_dword {v(t+1)}, {v(t)}, {SRD_WS}, 0 offen sc1
""")


def code_prefetch(p, t, u):
    p(f"""
s_getpc_b64 s[80:81]
L_pc{u}:
s_sub_u32 s80, s80, L_pc{u}-{NAME}_kernel
s_subb_u32 s81, s81, 0
s_bfe_u32 s4, s2, 0x30003
s_lshl_b32 s5, {S_WAVE}, 3
s_add_u32 s4, s4, s5
s_lshl_b32 s4, s4, 7
v_min_u32 {v(t)}, 11, {LANE}
v_lshl_add_u32 {v(t)}, {v(t)}, 12, s4
v_min_u32 {v(t)}, L_code_end-{NAME}_kernel-4, {v(t)}
global_load_dword {v(t)}, {v(t)}, s[80:81]
""")


def rotated(p, blocks, name):
    p(f"s_lshr_b32 s4, s15, 5\ns_mov_b32 s5, 0\ns_cmp_eq_u32 s4, 1\ns_cbranch_scc1 L_{name}1\ns_cmp_eq_u32 s4, 2\ns_cbranch_scc1 L_{name}2")
    for k, blk in enumerate(blocks):
        p(f"L_{name}{k}:")
        p.add(blk)
        p(f"s_add_u32 s5, s5, 1\ns_cmp_eq_u32 s5, 3\ns_cbranch_scc1 L_{name}_done")
    p(f"s_branch L_{name}0\nL_{name}_done:")


def build():
    p = Prog()
    prologue(p, 256, 'L_end')
    w1 = lambda i, first=False: w_loads(68, 252, i, a(4*i, 4), 'sc1', 'w1', first)
    w2 = lambda i, first=False: w_loads(70, 253, i, w2_reg(i), 'sc1', 'w2', first)
    p("s_cmp_ge_u32 s2, 160\ns_cbranch_scc1 L_helper")

    p("s_and_b32 s4, s2, 7\ns_mul_i32 s4, s4, 20\ns_lshr_b32 s5, s2, 3\ns_add_u32 s15, s4, s5")
    R = ConvRegs()
    xl = conv_loads(p, R, 's15')
    code_prefetch(p, 254, 'a')
    p(f"""
s_and_b32 s4, s2, 7
s_mul_i32 s4, s4, 160
s_bfe_u32 s5, s2, 0x10006
s_mul_i32 s5, s5, 156
s_add_u32 s4, s4, s5
s_bfe_u32 s5, s2, 0x30003
s_lshl_b32 s6, {S_WAVE}, 3
s_add_u32 s5, s5, s6
s_mul_i32 s5, s5, 1280
s_add_u32 s4, s4, s5
v_mul_u32_u24 v255, {32*1280}, {LANE}
v_add_u32 v255, s4, v255
global_load_dword v255, v255, {P_X}
""")
    ffn_coords(p)
    w_bases(p)
    conv_addresses(p, R, 's15')
    p(f"v_lshlrev_b32 v253, 4, {LANE}")
    lane_swap_addr(p, 252, R.t)
    stamp(p, 1)
    xs = opt('xs', 6)
    at_row = {opt('x0', 2) + xs*i: [xl[i]] for i in range(8)}
    ip = init_flag_poll(R.fl)
    at_row.setdefault(opt('ipr', 50), []).extend(items(ip[0] + '\n' + ip[1]))
    q = Prog()
    conv_stat_loads(q, R, 'sc1')
    kgen(p, R, at_row, check_or_spin(ip[1], ip[2], 4) + q.items)
    stamp(p, 2)
    conv_xprep(p, R)
    pp1, pp2 = pack_flag_poll(R.fl, 1), pack_flag_poll(R.fl + 2, 2)
    p(pp1[0])
    p(pp2[0])
    stamp(p, 3)
    cond = '\n'.join(f"v_min3_u32 {v(R.t)}, {v(R.t) if i else v(R.st)}, {v(R.st+4*i+2)}, {v(R.st+4*i+4)}" for i in range(3))
    cond += f"\nv_min_u32 {v(R.t)}, {v(R.t)}, {v(R.st+14)}\nv_cmp_eq_u32 vcc, 0, {v(R.t)}"
    p.add(check_or_spin(render(q.items), cond))
    stamp(p, 4)
    conv_normalize(p, R)
    stamp(p, 5)
    d0 = opt('d0', 3)
    d1 = d0 + 1
    extra = {d0 - 3: {13: items(pp1[1])}, d0: {13: check_or_spin(pp1[1], pp1[2], 4)}}
    n = 0
    for dl in range(d1, 16):
        for g in (1, 5, 9, 13, 17):
            if n < 60:
                extra.setdefault(dl, {}).setdefault(g, []).extend(w1(n))
                n += 1
    d2 = opt('d2', 15)
    extra.setdefault(d2 - 3, {}).setdefault(15, []).extend(items(pp2[1]))
    extra.setdefault(d2, {}).setdefault(15, []).extend(check_or_spin(pp2[1], pp2[2], 4))
    conv_main(p, R, 'sc1', extra=extra)
    stamp(p, 6)
    for i in range(n, 60):
        p.add(w1(i))
    ne = opt('ne', 8)
    for i in range(ne):
        p.add(w2(i))
    p.wait_vm('hst')
    publish_wg_flag(p, R.t, 2)
    stamp(p, 7)
    for i in range(ne, W2_EARLY):
        p.add(w2(i, i == ne))
    p("s_branch L_ffn")
    p.flush()

    p("L_helper:\ns_sub_u32 s15, s2, 160\ns_cmp_ge_u32 s15, 64\ns_cbranch_scc1 L_h_nostat")
    p(f"""
v_mov_b32 v60, 0
v_mov_b32 v61, 0
v_mov_b32 v62, 0
v_mov_b32 v63, 0
s_lshl_b32 s4, s15, 8
v_and_b32 v56, 15, {LANE}
v_lshl_add_u32 v56, v56, 4, s4
v_bfe_u32 v57, {LANE}, 4, 1
v_lshl_add_u32 v56, v57, 14, v56
s_lshl_b32 s4, s15, 10
s_add_u32 s4, s4, {WS_FLAG - 32*128}
v_lshl_add_u32 v57, {LANE}, 7, s4
v_cmp_gt_u32 vcc, 32, {LANE}
v_cndmask_b32 v56, v57, v56, vcc
s_cmp_eq_u32 {S_WAVE}, 0
s_cselect_b32 s4, 40, 0
v_mov_b32 v57, {OOB}
v_cmp_gt_u32 vcc, s4, {LANE}
v_cndmask_b32 v56, v57, v56, vcc
""")
    p(f"buffer_store_dwordx4 v[60:63], v56, {SRD_WS}, 0 offen sc1", tag='zero')
    stats1_loads(p, 's15')
    code_prefetch(p, 254, 'b')
    p.wait_vm('zero')
    p(f"""
s_barrier
s_lshl_b32 s4, s15, 2
s_cmp_eq_u32 {S_WAVE}, 0
s_cselect_b32 s5, 1, 0
v_mov_b32 v56, s4
v_cmp_gt_u32 vcc, s5, {LANE}
v_cndmask_b32 v56, v57, v56, vcc
v_mov_b32 v58, 1
buffer_store_dword v58, v56, {SRD_DBG}, 0 offen sc1
""")
    pack1_loads(p, 's15')
    stats1_compute(p, 's15', 'sc1')
    stamp(p, 8)
    p("s_branch L_h_pack")
    p.flush()
    p("L_h_nostat:")
    pack1_loads(p, 's15')
    code_prefetch(p, 254, 'c')
    p("L_h_pack:")
    ffn_coords(p)
    w_bases(p)
    lane_swap_addr(p, 252, 2)
    pack1_compute(p, 's15', 'sc1')
    pack2_loads(p, 's15')
    stamp(p, 9)
    blocking(p, init_flag_poll(56))
    publish_wg_flag(p, 56, 1)
    stamp(p, 10)
    p("s_cmp_ge_u32 s15, 80\ns_cbranch_scc1 L_h_done")
    pack2_compute(p, 's15', 'sc1')
    p("L_h_done:\ns_waitcnt vmcnt(0)")
    publish_wg_flag(p, 56, 2)
    stamp(p, 11)
    p(f"v_lshlrev_b32 v253, 4, {LANE}")
    flat = lambda L: [x for g in L for x in g]
    blocking(p, pack_flag_poll(56, 1), 8)
    rotated(p, [flat(w1(i) for i in range(20*k, 20*k + 20)) for k in range(3)], 'rw')
    blocking(p, pack_flag_poll(56, 2), 8)
    rotated(p, [flat(w2(i) for i in range(lo, hi)) for lo, hi in ((0, 12), (12, 24), (24, W2_EARLY))], 'rx')
    p(f"""
s_lshr_b32 s4, s15, 5
s_mul_i32 s4, s4, {74*128}
s_add_u32 s4, s4, s70
s_add_u32 s4, s4, {W2_EARLY*1024}
v_min_u32 v56, 37, {LANE}
v_lshlrev_b32 v56, 8, v56
buffer_load_dword v254, v56, {SRD_WS}, s4 offen sc1
buffer_load_dword v255, v56, {SRD_WS}, s4 offen offset:128 sc1
""")
    stamp(p, 12)
    p.flush()

    p("L_ffn:")
    R = G16Regs()
    G2 = G2Regs(R)
    g16_setup(p, R)
    g16_cs(p, R, 'sc1')
    g16_cs_sum(p, R)
    p(f"s_and_b32 s4, {S_DT}, 3\ns_mul_i32 s4, s4, 3072\nv_min_u32 v252, 23, {LANE}\nv_lshl_add_u32 v252, v252, 7, s4")
    S2 = R.acc[2]
    s2l = stats2_loads(p, S2, 'sc1')
    stats2_final_addr(p, S2)
    t = R.t
    p(f"s_mul_i32 s4, {S_WAVE}, {40*128}\ns_add_u32 s4, s4, {WS_FLAG}\nv_min_u32 {v(t)}, 39, {LANE}\nv_lshl_add_u32 {v(t)}, {v(t)}, 7, s4")
    spin(p, f"buffer_load_dword {v(t+1)}, {v(t)}, {SRD_WS}, 0 offen sc1", f"v_cmp_ne_u32 vcc, 2, {v(t+1)}", opt('bsleep', 2))
    p("s_barrier")
    stamp(p, 13)
    p.add(s2l)
    for tt in range(2):
        for grp in g16_dma(R, tt, 'sc1'):
            p.add(grp)
    stats2_partial(p, S2)
    stamp(p, 14)
    q = Prog()
    stats2_final(q, S2, 'sc1')
    hooks = {'pre': [(0, it) for it in q.items]}
    fixed = {}
    n = 0
    dsp = opt('dsp', 4)
    for tt in range(2, 8):
        for grp in g16_dma(R, tt, 'sc1'):
            fixed.setdefault(max(dsp*n, 108 if tt == 7 else 0), []).extend(grp)
            n = max(n + 1, -(-108 // dsp) + 1 if tt == 7 else 0)
    lag = opt('lag', 2)
    stl = g16_stat_loads(R, 'sc1')
    fixed.setdefault(60*lag - opt('stp', 30), []).extend(stl)
    cond = '\n'.join(f"v_min3_u32 {v(t)}, {v(t) if i else v(R.st)}, {v(R.st+4*i+2)}, {v(R.st+4*i+4)}" for i in range(3))
    cond += f"\nv_min_u32 {v(t)}, {v(t)}, {v(R.st+14)}\nv_cmp_eq_u32 vcc, 0, {v(t)}"
    fixed.setdefault(60*lag, []).extend(check_or_spin(render(stl), cond))

    def cflag(j):
        c = Prog()
        c.wait_vm(f'g{2*j+1}')
        c(f"v_mov_b32 {v(R.cfv)}, {j+1}\nbuffer_store_dword {v(R.cfv)}, {v(R.aCf)}, {SRD_WS}, 0 offen sc1")
        return c.items
    hooks[('in_epi', 2)] = (opt('cf', 50), cflag(0))
    hooks[('in_epi', 4)] = (opt('cf', 50), cflag(1))
    hooks[('in_epi', 7)] = (opt('cf2', 40), cflag(2))
    poll = f"buffer_load_dword {v(R.pv)}, {v(R.aPoll)}, {SRD_WS}, 0 offen sc1"
    gate = lambda need: check_or_spin(poll, f"v_cmp_gt_u32 vcc, {need}, {v(R.pv)}", 1)
    touch_g = lambda tt: items(f"s_add_u32 s89, s76, {tt*2*49152}\nbuffer_load_dword v254, v252, {SRD_WS}, s89 offen sc1")
    last = {}
    for k in range(60 - W2_EARLY):
        g0 = max(w2_stage(k)[0], 132)
        last[g0] = last.get(g0, -1) + 1
        fixed.setdefault(g0 + 4*last[g0], []).extend(w2_stage_dma(k, R.aL16, 'sc1'))
    fixed.setdefault(opt('p1', 364), []).extend(items(poll))
    fixed.setdefault(opt('p1', 364) + 36, []).extend(stamp_items(20) + gate(1) + stamp_items(21) + touch_g(0))
    for s_, grp in enumerate(g2_gloads(G2, 0, 'sc1')):
        fixed.setdefault(432 + 4*s_, []).extend(grp)
    fixed.setdefault(479, []).extend(items(poll))
    for k in range(4):
        fixed.setdefault(119 + 120*k, []).extend(stamp_items(15 + k))
    hooks['fixed'] = fixed
    g16_main(p, R, 'sc1', lag=lag, hooks=hooks)
    stamp(p, 19)

    h2 = {}
    q = Prog()
    g2_setup(q, G2)
    h2[('queue', 0)] = [(0, it) for it in q.items]
    q = Prog()
    q.wait_vm('w2s')
    h2[('before', 0)] = gate(2) + stamp_items(22) + q.items
    f0 = {}
    for k in range(60 - W2_EARLY):
        f0.setdefault(k, []).append(w2_stage_read(G2, k))
    for s_, grp in enumerate(g2_gloads(G2, 1, 'sc1')):
        f0.setdefault(4*s_, []).extend(grp)
    f0.setdefault(opt('c3', 34), []).extend(cflag(3) + stamp_items(30))
    f0.setdefault(36, []).extend(items("s_waitcnt lgkmcnt(0)\ns_barrier"))
    f0.setdefault(50, []).extend(g2_res_loads(G2, 0, 'sc1') + g2_res_loads(G2, 1, 'sc1'))
    f0.setdefault(54, []).extend(g2_res_loads(G2, 2, 'sc1') + g2_res_loads(G2, 3, 'sc1'))
    f0.setdefault(opt('p3', 58), []).extend(items(poll))
    h2[('fixed', 0)] = f0
    g3 = opt('g3', 30)
    f1 = {g3: stamp_items(29) + gate(3) + stamp_items(31)}
    for s_, grp in enumerate(g2_gloads(G2, 2, 'sc1')):
        f1.setdefault(g3 + 1 + 2*s_, []).extend(grp)
    f1.setdefault(59, []).extend(items(poll))
    h2[('fixed', 1)] = f1
    g4 = opt('g4', 12)
    f2 = {g4: gate(4) + stamp_items(28)}
    for s_, grp in enumerate(g2_gloads(G2, 3, 'sc1')):
        f2.setdefault(g4 + 1 + 2*s_, []).extend(grp)
    h2[('fixed', 2)] = f2
    g2_main(p, G2, opt('outflag', ''), h2)
    stamp(p, 27)
    stamp_dump(p)
    diag_tail(p)
    p("L_end:\ns_endpgm\nL_code_end:")
    s = HEAD + f"; @launch grid=(256,1,1) block=(256,1,1) lds={LDS}\n"
    s += '.amdgcn_target "amdgcn-amd-amdhsa--gfx950"\n'
    s += kernel(f'{NAME}_kernel', p)
    return s


if __name__ == '__main__':
    open(sys.argv[1], 'w').write(build())
```

```python
import re

REG_RE = re.compile(r'(?<![\w.])([vas])(?:\[(\d+):(\d+)\]|(\d+))(?![\w])')


def regs_of(text):
    out = []
    for m in REG_RE.finditer(text):
        k = m.group(1)
        if m.group(4) is not None:
            out.append((k, int(m.group(4))))
        else:
            out += [(k, i) for i in range(int(m.group(2)), int(m.group(3)) + 1)]
    if re.search(r'(?<![\w.])vcc(?![\w])', text):
        out += [('s', 'vcc')]
    if re.search(r'(?<![\w.])m0(?![\w])', text):
        out += [('s', 'm0')]
    if re.search(r'(?<![\w.])exec(_lo|_hi)?(?![\w])', text):
        out += [('s', 'exec')]
    return out


def split_ops(rest):
    ops, depth, cur = [], 0, ''
    for ch in rest:
        if ch == '[':
            depth += 1
        if ch == ']':
            depth -= 1
        if ch == ',' and depth == 0:
            ops.append(cur.strip())
            cur = ''
        else:
            cur += ch
    if cur.strip():
        ops.append(cur.strip())
    return ops


DUMMY = {('v', 254), ('v', 255)}
TRANS = ('v_exp_f32', 'v_log_f32', 'v_rcp_f32', 'v_rsq_f32', 'v_sqrt_f32', 'v_sin_f32', 'v_cos_f32')


class Ins:
    def __init__(self, text, tag=None):
        self.text = text.strip()
        self.tag = tag
        t = self.text.split(';')[0].strip()
        self.label = t.endswith(':')
        self.directive = t.startswith('.') and not self.label
        self.op = '' if (self.label or self.directive or not t) else t.split()[0]
        rest = t[len(self.op):] if self.op else ''
        ops = split_ops(rest)
        self.dst, self.src = [], []
        self.srcC, self.srcAB = [], []
        op = self.op
        self.kind = 'other'
        if not op:
            return
        R = [regs_of(o) for o in ops]
        flat = lambda L: [r for x in L for r in x]
        if op.startswith('v_mfma'):
            self.kind = 'mfma'
            self.passes = 8 if '32x32x16' in op else 4
            self.dst = R[0]
            self.srcAB = R[1] + R[2]
            self.srcC = R[3]
            self.src = self.srcAB + self.srcC
        elif op.startswith('v_'):
            self.kind = 'valu'
            base = op.replace('_e32', '').replace('_e64', '').replace('_dpp', '').replace('_sdwa', '')
            self.trans = base in TRANS
            self.dot = base.startswith('v_dot')
            self.dpp = ('row_' in t) or ('quad_perm' in t) or ('wave_' in t)
            self.perml = base.startswith('v_permlane')
            self.readlane = base.startswith('v_readlane') or base.startswith('v_readfirstlane')
            if self.perml or base == 'v_swap_b32':
                self.dst = R[0] + R[1]
                self.src = R[0] + R[1]
            elif '_co_' in base:
                self.dst = R[0] + R[1]
                self.src = flat(R[2:])
            else:
                self.dst = R[0]
                self.src = flat(R[1:])
                if base.startswith(('v_fmac', 'v_dot2c', 'v_pk_fmac', 'v_writelane')) or self.dpp:
                    self.src += R[0]
                if base.startswith('v_cmpx'):
                    self.dst = self.dst + [('s', 'exec')]
        elif op.startswith('ds_'):
            self.kind = 'ds'
            if op.startswith(('ds_read', 'ds_bpermute', 'ds_permute', 'ds_swizzle')):
                self.dst = R[0]
                self.src = flat(R[1:])
            else:
                self.src = flat(R)
        elif op.startswith(('buffer_', 'global_')):
            self.kind = 'vm'
            self.lds = bool(re.search(r'\blds\b', t)) or '_lds_' in op
            self.store = 'store' in op or 'atomic' in op
            self.wide = self.store and ('x3' in op or 'x4' in op)
            if 'load' in op and not self.lds:
                self.dst = [r for r in R[0] if r not in DUMMY]
                self.src = flat(R[1:])
            else:
                self.src = flat(R)
                if self.lds:
                    self.src.append(('s', 'm0'))
            if self.store:
                self.data = R[0] if op.startswith('buffer_') else R[1]
        elif op.startswith(('s_load', 's_buffer_load', 's_memtime', 's_memrealtime')):
            self.kind = 'smem'
            self.dst = R[0]
            self.src = flat(R[1:])
        elif op.startswith('s_'):
            self.kind = 'salu'
            if op.startswith(('s_cmp', 's_cbranch', 's_branch', 's_waitcnt', 's_nop', 's_barrier', 's_endpgm',
                              's_sleep', 's_setprio', 's_setpc', 's_bitcmp')):
                self.src = flat(R)
            else:
                self.dst = R[0] if R else []
                self.src = flat(R[1:])
                if 'saveexec' in op:
                    self.dst = self.dst + [('s', 'exec')]

    def states(self):
        if self.op == 's_nop':
            return int(self.text.split(';')[0].split()[1], 0) + 1
        return 1 if self.op else 0


def need_states(p, c):
    n = 0
    ov = lambda a, b: bool(set(a) & set(b))
    vec = lambda L: [r for r in L if r[0] in 'va']
    sc = lambda L: [r for r in L if r[0] == 's']
    if p.kind == 'valu':
        if c.kind == 'mfma' and ov(vec(p.dst), c.src):
            n = max(n, 3 if p.dot else 2)
        if c.kind == 'mfma' and ('s', 'exec') in p.dst:
            n = max(n, 4)
        if c.kind == 'valu':
            if p.trans and not c.trans and ov(p.dst, c.src):
                n = max(n, 1)
            if p.dot and ov(p.dst, c.src + c.dst) and p.op != c.op:
                n = max(n, 3)
            if p.dot and p.op == c.op and ov(p.dst, [r for r in c.src if r not in c.dst]):
                n = max(n, 3)
            if (c.dpp or c.perml) and ov(vec(p.dst), c.src):
                n = max(n, 2)
            if c.readlane and ov(vec(p.dst), c.src):
                n = max(n, 1)
            if ov(sc(p.dst), c.src):
                n = max(n, 4 if c.readlane else 2)
            if ('s', 'exec') in p.dst and (c.dpp or c.perml or c.readlane):
                n = max(n, 5)
            if 'op_sel' in p.text and not p.op.startswith('v_pk_') and ov(p.dst, c.src):
                n = max(n, 1)
        if c.kind in ('vm', 'ds') and p.dot and ov(p.dst, c.src):
            n = max(n, 3)
        if c.kind in ('vm', 'ds') and p.trans and ov(p.dst, c.src):
            n = max(n, 1)
        if c.kind == 'vm' and ov(sc(p.dst), c.src):
            n = max(n, 5)
        if c.kind in ('salu', 'smem') and ov(sc(p.dst), c.src):
            n = max(n, 1)
    if p.kind == 'mfma':
        big = p.passes == 8
        if c.kind == 'mfma':
            if ov(p.dst, c.srcAB):
                n = max(n, 12 if big else 8)
            if ov(p.dst, c.srcC) and not (p.dst == c.srcC and p.passes == c.passes):
                n = max(n, 10 if big else 6)
            if ov(p.dst, c.dst) and not (p.dst == c.srcC and p.passes == c.passes):
                n = max(n, 10 if big else 6)
        elif c.kind in ('valu', 'vm', 'ds'):
            if ov(p.dst, c.src + c.dst):
                n = max(n, 12 if big else 8)
            if c.kind == 'valu' and ov(p.srcC, c.dst):
                n = max(n, 7 if big else 3)
    if p.kind == 'vm' and p.wide and ov(p.data, c.dst):
        n = max(n, 2)
    if p.kind == 'salu' and ('s', 'm0') in p.dst and ('s', 'm0') in c.src and c.kind in ('vm', 'ds'):
        n = max(n, 1)
    return n


class Prog:
    def __init__(self):
        self.items = []

    def __call__(self, text, tag=None):
        for line in text.strip('\n').split('\n'):
            if line.strip():
                self.items.append(Ins(line, tag))
        return self

    def add(self, items):
        self.items += items

    def wait_vm(self, tag):
        i = Ins('; wait_vm')
        i.kind = 'wait_vm'
        i.tag = tag
        self.items.append(i)

    def mark_vm(self, tag):
        i = Ins('; mark_vm')
        i.kind = 'mark_vm'
        i.tag = tag
        self.items.append(i)

    def flush(self):
        i = Ins('; flush')
        i.kind = 'flush'
        self.items.append(i)


def interleave(main, fill, per_gap, start=0):
    out, j = [], 0
    for g, m in enumerate(main):
        out.append(m)
        if g >= start:
            k = per_gap(g) if callable(per_gap) else per_gap
            out += fill[j:j + k]
            j += k
    out += fill[j:]
    return out


def finalize(items):
    out = []
    vmq, lgq = [], []
    smem_pending = []

    def emit_wait(vm=None, lg=None):
        parts = []
        if vm is not None:
            parts.append(f'vmcnt({min(vm, 63)})')
        if lg is not None:
            parts.append(f'lgkmcnt({min(lg, 15)})')
        out.append(Ins('s_waitcnt ' + ' '.join(parts)))

    for c in items:
        assert not (set(c.src) | set(c.dst)) & DUMMY, c.text
        if c.kind == 'flush':
            vmq.clear(); lgq.clear(); smem_pending.clear()
            continue
        if c.kind == 'mark_vm':
            assert not vmq
            vmq.append(c)
            continue
        if c.kind == 'wait_vm':
            idx = [i for i, p in enumerate(vmq) if p.tag == c.tag]
            if idx:
                n = len(vmq) - 1 - idx[-1]
                emit_wait(vm=n)
                del vmq[:len(vmq) - min(n, 63)]
            continue
        if c.op == 's_waitcnt':
            m = re.search(r'vmcnt\((\d+)\)', c.text)
            if m:
                n = int(m.group(1))
                del vmq[:max(0, len(vmq) - n)]
            m = re.search(r'lgkmcnt\((\d+)\)', c.text)
            if m:
                n = int(m.group(1))
                if n == 0:
                    smem_pending.clear()
                    lgq.clear()
                elif not smem_pending:
                    del lgq[:max(0, len(lgq) - n)]
            out.append(c)
            continue
        touched = set(c.src) | set(c.dst)
        vm = lg = None
        idx = [i for i, p in enumerate(vmq) if touched & set(p.dst)]
        if idx:
            vm = len(vmq) - 1 - idx[-1]
        same_q = c.kind == 'ds'
        idx = [i for i, p in enumerate(lgq) if (set(c.src) if same_q else touched) & set(p.dst)]
        if idx:
            lg = 0 if smem_pending else len(lgq) - 1 - idx[-1]
        if any(touched & set(p.dst) for p in smem_pending):
            lg = 0
        if vm is not None or lg is not None:
            emit_wait(vm, lg)
            if vm is not None:
                del vmq[:len(vmq) - min(vm, 63)]
            if lg is not None:
                if lg == 0:
                    smem_pending.clear()
                del lgq[:len(lgq) - min(lg, 15)]
        if c.kind == 'vm':
            vmq.append(c)
        elif c.kind == 'ds':
            lgq.append(c)
        elif c.kind == 'smem':
            smem_pending.append(c)
        out.append(c)

    res = []
    for c in out:
        if c.op:
            need, dist = 0, 0
            for p in reversed(res):
                if dist >= 20:
                    break
                if p.op:
                    need = max(need, need_states(p, c) - dist)
                    dist += p.states()
            if need > 0:
                res.append(Ins(f's_nop {need - 1}'))
        res.append(c)
    return res


def render(items):
    return '\n'.join(('' if (i.label or i.directive) else '    ') + i.text for i in items) + '\n'


def kernel(name, prog, vgpr=512, sgpr=102, accum=256):
    body = render(finalize(prog.items))
    return f""".text
.globl {name}
.p2align 8
.type {name},@function
{name}:
{body}.section .rodata,"a"
.p2align 6
.amdhsa_kernel {name}
  .amdhsa_next_free_vgpr {vgpr}
  .amdhsa_next_free_sgpr {sgpr}
  .amdhsa_accum_offset {accum}
  .amdhsa_group_segment_fixed_size 0
  .amdhsa_kernarg_size 128
  .amdhsa_user_sgpr_count 2
  .amdhsa_user_sgpr_kernarg_segment_ptr 1
  .amdhsa_system_sgpr_workgroup_id_x 1
.end_amdhsa_kernel
"""
```

```python
from asmlib import *
import struct

WS_ST1, WS_ST2, WS_CS, WS_FLAG, WS_CF = 0, 0x4000, 0x8000, 0x18000, 0x20000
WS_W1P, WS_W2P, WS_H, WS_G, WS_SIZE = 0x100000, 0x4C0000, 0x6A0000, 0x920000, 0xF20000
OOB = 0x7ffffff0
WS_REP = 0x80000
WS_STAMP = 0x40000
STAMPS = False
DIAG = None


def stamp(p, idx):
    if DIAG is not None and DIAG == idx:
        p("s_waitcnt lgkmcnt(0)\ns_memrealtime s[96:97]\ns_waitcnt lgkmcnt(0)\ns_sub_u32 s99, s96, s94")
    if not STAMPS:
        return
    p(f"""
s_memrealtime s[96:97]
s_memtime s[92:93]
s_waitcnt lgkmcnt(0)
v_writelane_b32 v1, s96, {idx}
v_writelane_b32 v1, s92, {32+idx}
""")


def stamp_items(idx):
    q = Prog()
    stamp(q, idx)
    return q.items


def stamp_dump(p):
    if not STAMPS:
        return
    p(f"""
s_lshl_b32 s98, s2, 2
s_add_u32 s98, s98, s3
s_lshl_b32 s98, s98, 8
s_add_u32 s98, s98, {WS_STAMP}
v_lshlrev_b32 v2, 2, v0
buffer_store_dword v1, v2, s[48:51], s98 offen
""")


P_X, P_ARE, P_AIM, P_BRE, P_BIM, P_CRE, P_CIM, P_LDT = [f's[{16+2*i}:{17+2*i}]' for i in range(8)]
P_DSK = 's[32:33]'
SRD_WS, SRD_OUT, SRD_W, SRD_DBG = 's[48:51]', 's[52:55]', 's[56:59]', 's[60:63]'
S_WAVE = 's3'
LANE = 'v0'
S_W0 = 's79'
A_L16, A_W1, A_CPOLL, A_CFLAG, A_GT = 240, 241, 251, 252, 253
W2V0, W2_NV = 128, 28
S2R = 216


def f32(x):
    return hex(struct.unpack('<I', struct.pack('<f', x))[0])


class Alloc:
    def __init__(self, start, kind='v', limit=256):
        self.n, self.kind, self.limit = start, kind, limit

    def __call__(self, n=1, align=None):
        align = align or (2 if n > 1 else 1)
        self.n = (self.n + align - 1) // align * align
        r = self.n
        self.n += n
        assert self.n <= self.limit, 'out of registers'
        return r


def v(i, n=1):
    return f'v{i}' if n == 1 else f'v[{i}:{i+n-1}]'


def a(i, n=1):
    return f'a{i}' if n == 1 else f'a[{i}:{i+n-1}]'


def prologue(p, nwg, exit_label, first_stamp=0, early=None):
    p(f"""
s_cmp_ge_u32 s2, {nwg}
s_cbranch_scc1 {exit_label}
{'s_memrealtime s[94:95]' if (STAMPS or DIAG is not None) else ''}
{'s_mov_b32 s99, 0' if DIAG is not None else ''}
{'s_memtime s[92:93]' if STAMPS else ''}
s_load_dwordx16 s[16:31], s[0:1], 0
s_load_dwordx16 s[32:47], s[0:1], 64
v_lshrrev_b32 v1, 6, v0
v_and_b32 v0, 63, v0
v_readfirstlane_b32 {S_WAVE}, v1
""")
    if early:
        early(p)
    p(f"""
s_mov_b32 s50, {WS_SIZE}
s_mov_b32 s51, 0x20000
s_mov_b32 s54, 2621440
s_mov_b32 s55, 0x20000
s_mov_b32 s58, 1966080
s_mov_b32 s59, 0x20000
s_mov_b32 s62, 256
s_mov_b32 s63, 0x20000
s_cmp_eq_u32 {S_WAVE}, 0
s_cselect_b32 {S_W0}, 1, 0
v_lshlrev_b32 {v(A_L16)}, 4, {LANE}
s_waitcnt lgkmcnt(0)
s_mov_b32 s48, s46
s_mov_b32 s49, s47
s_mov_b32 s52, s42
s_mov_b32 s53, s43
s_mov_b32 s60, s44
s_mov_b32 s61, s45
""")
    if STAMPS:
        p(f"""
v_mov_b32 v1, 0xa5a5a5a5
v_writelane_b32 v1, s94, {first_stamp}
v_writelane_b32 v1, s92, {32+first_stamp}
""")


def ln_finalize(p, s1, s2, t, mb, sd):
    p(f"""
v_mul_f32 {v(s1)}, {f32(1/640)}, {v(s1)}
v_mul_f32 {v(s2)}, {f32(1/640)}, {v(s2)}
v_fma_f32 {v(s2)}, -{v(s1)}, {v(s1)}, {v(s2)}
v_max_f32 {v(s2)}, 0, {v(s2)}
v_cvt_pk_bf16_f32 {v(t)}, {v(s1)}, {v(s2)}
v_lshlrev_b32 {v(mb)}, 16, {v(t)}
v_and_b32 {v(t)}, 0xffff0000, {v(t)}
v_add_f32 {v(t)}, {f32(1e-5)}, {v(t)}
v_cvt_pk_bf16_f32 {v(t)}, {v(t)}, {v(t)}
v_and_b32 {v(t)}, 0xffff0000, {v(t)}
v_sqrt_f32 {v(t)}, {v(t)}
v_cvt_pk_bf16_f32 {v(t)}, {v(t)}, {v(t)}
v_and_b32 {v(sd)}, 0xffff0000, {v(t)}
""")


def stats1_loads(p, hi, r0=8):
    p(f"""
s_lshr_b32 s4, {hi}, 4
s_lshr_b32 s5, {hi}, 2
s_and_b32 s5, s5, 3
s_and_b32 s6, {hi}, 3
s_lshl_b32 s6, s6, 2
s_add_u32 s6, s6, {S_WAVE}
s_lshl_b32 s6, s6, 7
s_lshl_b32 s5, s5, 3
s_lshl_b32 s4, s4, 1
s_add_u32 s6, s6, s5
s_add_u32 s6, s6, s4
v_lshrrev_b32 v2, 4, {LANE}
v_lshlrev_b32 v2, 5, v2
v_bfe_u32 v3, {LANE}, 3, 1
v_add3_u32 v2, v2, v3, s6
v_mul_u32_u24 v2, 1280, v2
v_and_b32 v3, 7, {LANE}
v_lshl_add_u32 v2, v3, 4, v2
""")
    for i in range(10):
        p(f"global_load_dwordx4 {v(r0+4*i, 4)}, v2, {P_X} offset:{i*128}")


def stats1_compute(p, hi, stflag, r0=8):
    p("s_mov_b32 s4, 0x3f803f80")
    for r in range(4, 8):
        p(f"v_mov_b32 {v(r)}, 0")
    for i in range(40):
        p(f"v_dot2c_f32_bf16 {v(4+(i&1))}, s4, {v(r0+i)}")
        p(f"v_dot2c_f32_bf16 {v(6+(i&1))}, {v(r0+i)}, {v(r0+i)}")
    p("v_add_f32 v4, v4, v5\nv_add_f32 v6, v6, v7")
    for d in ('quad_perm:[1,0,3,2]', 'quad_perm:[2,3,0,1]', 'row_half_mirror'):
        p(f"v_add_f32_dpp v4, v4, v4 {d} row_mask:0xf bank_mask:0xf")
        p(f"v_add_f32_dpp v6, v6, v6 {d} row_mask:0xf bank_mask:0xf")
    ln_finalize(p, 4, 6, 5, 7, 8)
    p(f"""
v_rcp_f32 v10, v8
s_lshl_b32 s4, {hi}, 8
s_lshl_b32 s5, {S_WAVE}, 6
s_add_u32 s4, s4, s5
v_or_b32 v10, 1, v10
v_mul_f32 v11, -v7, v10
v_and_b32 v3, 7, {LANE}
v_add_u32 v2, s4, {LANE}
v_cmp_eq_u32 vcc, 0, v3
v_mov_b32 v9, {OOB}
v_cndmask_b32 v2, v9, v2, vcc
buffer_store_dwordx2 v[10:11], v2, {SRD_WS}, 0 offen {stflag}
""", tag='st1')


PW1_LDS, PW2_LDS = 0, 40960
SRD_W2 = 's[84:87]'


def lane_swap_addr(p, d, t):
    p(f"""
v_lshrrev_b32 {v(t)}, 1, {LANE}
v_xor_b32 {v(t)}, {v(t)}, {LANE}
v_bfe_u32 {v(t)}, {v(t)}, 1, 1
v_mul_u32_u24 {v(t)}, 6, {v(t)}
v_xor_b32 {v(t)}, {v(t)}, {LANE}
v_lshlrev_b32 {v(d)}, 4, {v(t)}
""")


def pack1_loads(p, hi):
    p(f"""
s_bitcmp1_b32 {S_WAVE}, 1
s_cselect_b32 s56, s38, s36
s_cselect_b32 s57, s39, s37
s_and_b32 s4, {hi}, 3
s_mul_i32 s4, s4, 160
s_and_b32 s5, {S_WAVE}, 1
s_mul_i32 s5, s5, 80
s_add_u32 s4, s4, s5
s_mul_i32 s4, s4, 3072
s_lshr_b32 s5, {hi}, 2
s_lshl_b32 s5, s5, 7
s_add_u32 s4, s4, s5
v_lshrrev_b32 v50, 3, {LANE}
v_mul_u32_u24 v50, 3072, v50
s_and_b32 s5, {S_WAVE}, 2
s_lshl_b32 s5, s5, 1
v_lshrrev_b32 v51, 4, {LANE}
v_or_b32 v51, s5, v51
v_xor_b32 v51, v51, {LANE}
v_and_b32 v51, 7, v51
v_lshl_add_u32 v50, v51, 4, v50
s_mul_i32 s5, {S_WAVE}, 10240
""")
    for i in range(10):
        p(f"s_add_u32 m0, s5, {PW1_LDS + i*1024}")
        p(f"buffer_load_dwordx4 v50, {SRD_W}, s4 offen lds", tag='pk1')
        p(f"s_add_u32 s4, s4, {8*3072}")


def pack1_compute(p, hi, stflag):
    p(f"""
v_lshrrev_b32 v2, 2, {LANE}
v_lshlrev_b32 v2, 7, v2
v_and_b32 v3, 1, {LANE}
v_mul_u32_u24 v4, 20480, v3
v_bfe_u32 v5, {LANE}, 1, 1
v_lshl_add_u32 v4, v5, 3, v4
v_bfe_u32 v5, {LANE}, 3, 2
v_lshl_add_u32 v5, v3, 2, v5
s_lshl_b32 s4, {S_WAVE}, 1
v_xor_b32 v5, s4, v5
v_lshl_add_u32 v4, v5, 4, v4
v_add3_u32 v2, v2, v4, {PW1_LDS}
v_xor_b32 v3, 16, v2
v_lshlrev_b32 v4, 4, {LANE}
v_mov_b32 v6, 0
v_mov_b32 v7, 0
s_mov_b32 s10, 0x3f803f80
s_lshr_b32 s6, {hi}, 2
s_lshl_b32 s6, s6, 3
s_lshl_b32 s7, {S_WAVE}, 1
s_add_u32 s6, s6, s7
s_and_b32 s7, {hi}, 3
""")
    p.wait_vm('pk1')
    p("s_barrier")
    for e in range(2):
        for i in range(5):
            r = 64 + 4*(5*e+i)
            p(f"ds_read_b64_tr_b16 {v(r, 2)}, {v(2+e)} offset:{i*4096}")
            p(f"ds_read_b64_tr_b16 {v(r+2, 2)}, {v(2+e)} offset:{i*4096 + 2048}")
    for e in range(2):
        p(f"""
s_add_u32 s8, s6, {e}
s_mul_i32 s9, s8, 171
s_lshr_b32 s9, s9, 9
s_mul_i32 s9, s9, 57
s_add_u32 s9, s9, s8
s_mul_i32 s8, s7, 15
s_add_u32 s9, s9, s8
s_lshl_b32 s9, s9, 10
s_add_u32 s9, s9, {WS_W1P}
""")
        for i in range(5):
            r = 64 + 4*(5*e+i)
            p(f"buffer_store_dwordx4 {v(r, 4)}, v4, {SRD_WS}, s9 offen {stflag}", tag='w1p')
            p("s_add_u32 s9, s9, 3072")
    for e in range(2):
        for k in range(20):
            p(f"v_dot2c_f32_bf16 {v(6+e)}, s10, {v(64+20*e+k)}")
    p(f"""
v_permlane32_swap_b32 v6, v7
s_mul_i32 s8, s7, 192
s_add_u32 s8, s8, s6
s_lshl_b32 s8, s8, 6
s_add_u32 s8, s8, {WS_CS}
v_add_f32 v6, v6, v7
v_mov_b32 v7, v6
v_lshrrev_b32 v8, 5, {LANE}
v_bfe_u32 v9, {v(A_W1)}, 4, 4
v_permlane16_swap_b32 v6, v7
v_lshl_add_u32 v8, v8, 4, v9
v_lshlrev_b32 v8, 2, v8
v_add_f32 v6, v6, v7
""")
    p(f"buffer_store_dword v6, v8, {SRD_WS}, s8 offen {stflag}", tag='w1p')


def pack2_loads(p, hi):
    p(f"""
s_mov_b32 s84, s40
s_mov_b32 s85, s41
s_mov_b32 s86, 1966080
s_mov_b32 s87, 0x20000
s_lshr_b32 s4, {hi}, 1
s_mul_i32 s4, s4, 96
s_mul_i32 s5, {S_WAVE}, 24
s_add_u32 s4, s4, s5
s_mul_i32 s4, s4, 1280
s_and_b32 s5, {hi}, 1
s_mul_i32 s5, s5, 640
s_add_u32 s4, s4, s5
s_mul_i32 s5, {S_WAVE}, 15360
""")
    for k in range(5):
        p(f"""
v_add_u32 v58, {64*k}, {LANE}
v_mul_u32_u24 v59, 1639, v58
v_lshrrev_b32 v59, 16, v59
v_mul_u32_u24 v59, 640, v59
v_lshl_add_u32 {v(52+k)}, v58, 4, v59
""")
    for i in range(15):
        p(f"s_add_u32 m0, s5, {PW2_LDS + i*1024}")
        p(f"buffer_load_dwordx4 {v(52 + i % 5)}, {SRD_W2}, s4 offen lds", tag='pk2')
        if i % 5 == 4:
            p(f"s_add_u32 s4, s4, {8*1280}")


def g_granule_cols(g12):
    w, g = divmod(g12, 3)
    return [24*w + c for c in (2*g, 2*g+1, 8+2*g, 9+2*g, 16+2*g, 17+2*g, 8*g+6, 8*g+7)]


def pack2_compute(p, hi, stflag, mid=None):
    p(f"""
v_lshrrev_b32 v2, 4, {LANE}
v_lshlrev_b32 v2, 3, v2
v_bfe_u32 v3, {LANE}, 2, 1
v_mul_u32_u24 v3, 640, v3
v_and_b32 v10, 3, {LANE}
v_lshl_add_u32 v3, v10, 3, v3
s_mul_i32 s4, {S_WAVE}, 160
s_add_u32 s4, s4, {PW2_LDS}
v_add_u32 v3, s4, v3
v_lshlrev_b32 v10, 4, {LANE}
v_and_b32 v11, 8, {LANE}
v_cmp_eq_u32 vcc, 0, v11
s_movk_i32 s4, 640
""")
    for s3 in range(3):
        for k in range(2):
            c = [sum(g_granule_cols(4*s3+g)[4*k+2*hf] << (8*g) for g in range(4)) for hf in range(2)]
            r = 14 + 2*s3 + k
            p(f"v_mov_b32 v12, {hex(c[0])}\nv_mov_b32 v13, {hex(c[1])}\nv_cndmask_b32 v12, v13, v12, vcc")
            p(f"v_bfe_u32 {v(r)}, v12, v2, 8\nv_mad_u32_u24 {v(r)}, {v(r)}, s4, v3")
    p(f"""
s_and_b32 s4, {hi}, 1
s_lshl_b32 s4, s4, 2
s_add_u32 s4, s4, {S_WAVE}
s_lshl_b32 s4, s4, 4
s_lshr_b32 s5, {hi}, 1
s_add_u32 s4, s4, s5
s_mul_i32 s4, s4, 15360
s_add_u32 s4, s4, {WS_W2P}
""")
    p.wait_vm('pk2')
    p("s_barrier")
    for d in range(5):
        for s3 in range(3):
            r = 104 + 4*(3*d+s3)
            p(f"ds_read_b64_tr_b16 {v(r, 2)}, {v(14+2*s3)} offset:{d*32}")
            p(f"ds_read_b64_tr_b16 {v(r+2, 2)}, {v(15+2*s3)} offset:{d*32}")
    p("s_mov_b32 s6, s4")
    if mid:
        mid(p)
    for f in range(15):
        p(f"buffer_store_dwordx4 {v(104+4*f, 4)}, v10, {SRD_WS}, s6 offen offset:{(f % 4)*1024} {stflag}", tag='w2p')
        if f % 4 == 3:
            p("s_add_u32 s6, s6, 4096")


KC_LDS, KC_CH, KC_COPY = 0, 16640, 4160
UC_LDS, UC_CH, UC_COPY, UC_PLANE = 66560, 10240, 5120, 1280
XC_LDS, XC_CH = 107520, 4096
TB_LDS, TB_W = 123904, 3072
CONV_LDS_END = TB_LDS + 4 * TB_W
STG_ROW = 800
LOG2E = 1.4426950408889634
INV2PI = 0.15915494309189535


class ConvRegs:
    def __init__(self):
        A = Alloc(2)
        self.t = A(6)
        self.x = A(16, 4)
        self.st = A(16, 4)
        self.dfrag = A(4, 4)
        self.aA = A()
        self.aB = A()
        self.aXr = A()
        self.aUw = A()
        self.aFix = A()
        self.aHw = A()
        self.aHr = A()
        self.aHg = A()
        self.aSt = A()
        self.aX = A(2)
        self.fl = A(4)
        self.base = A.n


def cmul(p, dsts, xs, es, tmps):
    for d, x, e, t in zip(dsts, xs, es, tmps):
        p(f"v_pk_mul_f32 {v(t, 2)}, {v(x, 2)}, {v(e, 2)} op_sel:[0,0] op_sel_hi:[0,1]")
    for d, x, e, t in zip(dsts, xs, es, tmps):
        p(f"v_pk_fma_f32 {v(d, 2)}, {v(x, 2)}, {v(e, 2)}, {v(t, 2)} op_sel:[1,1,0] op_sel_hi:[1,0,1] neg_lo:[0,1,0]")


def conv_loads(p, R, sq):
    A = Alloc(R.base)
    R.pd = A(6)
    R.ps = A(6)
    R.ldt = A()
    R.dsk = A()
    R.kbase = A.n
    t = R.t
    p(f"""
s_lshl_b32 s4, {sq}, 2
s_add_u32 s4, s4, {S_WAVE}
s_mul_i32 s5, s4, 384
v_lshl_add_u32 {v(t)}, {LANE}, 2, s5
v_lshl_add_u32 {v(t+1)}, {LANE}, 1, s5
s_lshl_b32 s4, s4, 1
v_mov_b32 {v(t+2)}, s4
global_load_ushort {v(R.ldt)}, {v(t+2)}, {P_LDT}
""")
    for i, P in enumerate((P_ARE, P_AIM, P_BRE, P_BIM, P_CRE, P_CIM)):
        p(f"global_load_dword {v(R.pd+i)}, {v(t)}, {P}")
        p(f"global_load_ushort {v(R.ps+i)}, {v(t+1)}, {P} offset:256")
    p(f"""
global_load_ushort {v(R.dsk)}, {v(t+2)}, {P_DSK}
s_mul_i32 s5, {S_WAVE}, {8*1280}
s_lshl_b32 s6, {sq}, 3
s_add_u32 s5, s5, s6
s_add_u32 s5, s5, {2*1280}
v_mul_u32_u24 {v(t+3)}, {32*1280}, {LANE}
v_add_u32 {v(R.aX)}, s5, {v(t+3)}
v_add_u32 {v(R.aX+1)}, {4*1280}, {v(R.aX)}
""")
    return [Ins(f"global_load_dwordx2 {v(R.x+2*i, 2)}, {v(R.aX+i//4)}, {P_X} offset:{(i%4-2)*1280}") for i in range(8)]


def conv_addresses(p, R, sq):
    t = R.t
    p(f"""
v_and_b32 {v(t)}, 15, {LANE}
v_lshrrev_b32 {v(t+1)}, 4, {LANE}
v_lshrrev_b32 {v(t+2)}, 2, {v(t)}
v_and_b32 {v(t+3)}, 3, {LANE}
s_mul_i32 s4, {S_WAVE}, {KC_CH}
v_sub_u32 {v(t+4)}, 3, {v(t+3)}
v_mul_u32_u24 {v(t+4)}, {KC_COPY}, {v(t+4)}
v_sub_u32 {v(t+5)}, {v(t+1)}, {v(t+2)}
v_add_u32 {v(t+5)}, 3, {v(t+5)}
v_lshl_add_u32 {v(t+4)}, {v(t+5)}, 4, {v(t+4)}
v_add_u32 {v(R.aA)}, s4, {v(t+4)}
s_mul_i32 s5, {S_WAVE}, {UC_CH}
s_add_u32 s5, s5, {UC_LDS}
v_mul_u32_u24 {v(t+4)}, {UC_PLANE}, {v(t+1)}
v_lshl_add_u32 {v(t+4)}, {v(t)}, 4, {v(t+4)}
v_add_u32 {v(R.aB)}, s5, {v(t+4)}
s_lshl_b32 s5, {S_WAVE}, 12
s_add_u32 s5, s5, {XC_LDS}
v_lshlrev_b32 {v(t+4)}, 10, {v(t+1)}
v_lshl_add_u32 {v(t+4)}, {v(t)}, 4, {v(t+4)}
v_add_u32 {v(R.aXr)}, s5, {v(t+4)}
s_mul_i32 s5, {S_WAVE}, {UC_PLANE}
s_add_u32 s5, s5, {UC_LDS + 256}
v_lshl_add_u32 {v(R.aUw)}, {LANE}, 4, s5
s_add_u32 s6, s5, {UC_PLANE}
s_cmp_eq_u32 {S_WAVE}, 3
s_cselect_b32 s6, {UC_LDS + 256 + 16}, s6
v_lshl_add_u32 {v(R.aFix)}, {LANE}, 4, s6
s_mul_i32 s5, {S_WAVE}, 2112
s_add_u32 s5, s5, {XC_LDS}
v_mul_u32_u24 {v(t+4)}, 528, {v(t+1)}
v_and_b32 {v(t+5)}, 1, {LANE}
v_lshl_add_u32 {v(t+4)}, {v(t+5)}, 8, {v(t+4)}
v_lshrrev_b32 {v(t+5)}, 1, {v(t)}
v_lshl_add_u32 {v(t+4)}, {v(t+5)}, 3, {v(t+4)}
v_add_u32 {v(R.aHw)}, s5, {v(t+4)}
v_mul_u32_u24 {v(t+4)}, 2112, {v(t+2)}
v_mul_u32_u24 {v(t+5)}, 528, {v(t+3)}
v_add_u32 {v(t+4)}, {v(t+4)}, {v(t+5)}
v_lshl_add_u32 {v(t+4)}, {v(t+1)}, 3, {v(t+4)}
s_lshl_b32 s5, {S_WAVE}, 6
s_add_u32 s5, s5, {XC_LDS}
v_add_u32 {v(R.aHr)}, s5, {v(t+4)}
s_mul_i32 s5, {S_WAVE}, {32*20480}
s_lshl_b32 s6, {sq}, 7
s_add_u32 s5, s5, s6
s_add_u32 s5, s5, {WS_H}
v_lshrrev_b32 {v(t+4)}, 5, {LANE}
v_bfe_u32 {v(t+5)}, {LANE}, 3, 2
v_lshl_add_u32 {v(t+4)}, {v(t+4)}, 3, {v(t+5)}
v_mul_u32_u24 {v(t+4)}, 20480, {v(t+4)}
v_and_b32 {v(t+5)}, 7, {LANE}
v_lshl_add_u32 {v(t+4)}, {v(t+5)}, 4, {v(t+4)}
v_add_u32 {v(R.aHg)}, s5, {v(t+4)}
s_lshl_b32 s5, {S_WAVE}, 10
s_add_u32 s5, s5, {WS_ST1}
v_lshl_add_u32 {v(R.aSt)}, {LANE}, 4, s5
""")
    z = R.st
    for k in range(4):
        p(f"v_mov_b32 {v(z+k)}, 0")
    p(f"ds_write_b128 {v(R.aB)}, {v(z, 4)}\nds_write_b128 {v(R.aB)}, {v(z, 4)} offset:{UC_COPY}")


def kgen(p, R, at_row=None, at_expand=None, at_start=None):
    A = Alloc(R.kbase)
    aW64, aW32, aFr, aT0, aT1, aT2, aG3, aK = [A() for _ in range(8)]
    aQ = A()
    pk = [A(4, 2), A(4, 2)]
    scratch = A(0, 4)
    E1, E16, E256, Q0, Q1, TM = [[A(2) for _ in range(3)] for _ in range(6)]
    P = {k: [A(2) for _ in range(3)] for k in range(2, 16, 2)}
    acc = A(12, 4)
    fB, fA = 0, 48
    t = R.t
    p(f"""
s_mul_i32 s4, {S_WAVE}, {KC_CH}
v_lshl_add_u32 {v(aW64)}, {LANE}, 3, s4
v_lshl_add_u32 {v(aK)}, {LANE}, 4, s4
s_add_u32 s5, s4, 512
v_lshl_add_u32 {v(aW32)}, {LANE}, 2, s5
v_and_b32 {v(t)}, 15, {LANE}
v_lshrrev_b32 {v(t+1)}, 4, {LANE}
v_mul_u32_u24 {v(t+2)}, {STG_ROW}, {v(t)}
v_lshl_add_u32 {v(t+2)}, {v(t+1)}, 4, {v(t+2)}
v_add_u32 {v(aFr)}, s4, {v(t+2)}
s_mul_i32 s5, {S_WAVE}, {TB_W}
s_add_u32 s5, s5, {TB_LDS}
v_lshlrev_b32 {v(t+2)}, 6, {v(t)}
v_lshl_add_u32 {v(t+2)}, {v(t+1)}, 4, {v(t+2)}
v_add_u32 {v(aT0)}, s5, {v(t+2)}
v_lshlrev_b32 {v(t+2)}, 5, {v(t)}
v_lshl_add_u32 {v(t+2)}, {v(t+1)}, 4, {v(t+2)}
v_lshlrev_b32 {v(t+3)}, 8, {v(t+1)}
v_lshl_add_u32 {v(t+4)}, {v(t)}, 4, {v(t+3)}
v_cmp_gt_u32 vcc, 32, {LANE}
v_cndmask_b32 {v(t+2)}, {v(t+4)}, {v(t+2)}, vcc
v_add_u32 {v(aT1)}, s5, {v(t+2)}
v_lshl_add_u32 {v(t+3)}, {v(t)}, 3, {v(t+3)}
v_add_u32 {v(aT2)}, s5, {v(t+3)}
v_sub_u32 {v(t+2)}, 63, {LANE}
v_lshl_add_u32 {v(aQ)}, {v(t+2)}, 2, s5
v_lshlrev_b32 {v(t+3)}, 5, {v(t+2)}
v_lshlrev_b32 {v(t+4)}, 4, {v(t+2)}
v_add_u32 {v(t+4)}, 512, {v(t+4)}
v_cndmask_b32 {v(t+3)}, {v(t+3)}, {v(t+4)}, vcc
v_add_u32 {v(aG3)}, s5, {v(t+3)}
""")
    dt = R.ldt
    p(f"""
v_lshlrev_b32 {v(dt)}, 16, {v(dt)}
v_mul_f32 {v(dt)}, {f32(LOG2E)}, {v(dt)}
v_exp_f32 {v(dt)}, {v(dt)}
v_cvt_pk_bf16_f32 {v(dt)}, {v(dt)}, {v(dt)}
v_and_b32 {v(dt)}, 0xffff0000, {v(dt)}
""")

    def unpack(dst3, i):
        p(f"v_lshlrev_b32 {v(dst3[0])}, 16, {v(R.pd+i)}")
        p(f"v_and_b32 {v(dst3[1])}, 0xffff0000, {v(R.pd+i)}")
        p(f"v_lshlrev_b32 {v(dst3[2])}, 16, {v(R.ps+i)}")
    Z = P[2]
    unpack(Z, 0)
    unpack([r+1 for r in Z], 1)
    p.add(at_start or [])
    for r in Z:
        p(f"v_mul_f32 {v(r)}, {v(dt)}, {v(r)}\nv_mul_f32 {v(r+1)}, {v(dt)}, {v(r+1)}")
    for r in Z:
        p(f"v_mul_f32 {v(r)}, {f32(LOG2E)}, {v(r)}\nv_mul_f32 {v(r+1)}, {f32(INV2PI)}, {v(r+1)}")
    for E, l in ((E16, 16.0), (E1, 1.0), (E256, 256.0)):
        M = P[4]
        for n in range(3):
            if l == 1.0:
                p(f"v_exp_f32 {v(M[n])}, {v(Z[n])}\nv_fract_f32 {v(M[n]+1)}, {v(Z[n]+1)}")
            else:
                p(f"v_mul_f32 {v(M[n])}, {f32(l)}, {v(Z[n])}\nv_mul_f32 {v(M[n]+1)}, {f32(l)}, {v(Z[n]+1)}")
        if l != 1.0:
            for n in range(3):
                p(f"v_exp_f32 {v(M[n])}, {v(M[n])}\nv_fract_f32 {v(M[n]+1)}, {v(M[n]+1)}")
        for n in range(3):
            p(f"v_cos_f32 {v(E[n])}, {v(M[n]+1)}\nv_sin_f32 {v(E[n]+1)}, {v(M[n]+1)}")
        for n in range(3):
            p(f"v_pk_mul_f32 {v(E[n], 2)}, {v(E[n], 2)}, {v(M[n], 2)} op_sel:[0,0] op_sel_hi:[1,0]")
    Bc, Cc = P[6], P[8]
    unpack(Bc, 2)
    unpack([r+1 for r in Bc], 3)
    unpack(Cc, 4)
    unpack([r+1 for r in Cc], 5)
    for r in Bc:
        p(f"v_mul_f32 {v(r)}, {v(dt)}, {v(r)}\nv_mul_f32 {v(r+1)}, {v(dt)}, {v(r+1)}")
    cmul(p, Q0, Cc, Bc, TM)

    cnt = [0]

    def put_row(row, src, neg=False):
        k = pk[cnt[0] & 1]
        cnt[0] += 1
        for n in range(3):
            p(f"v_cvt_pk_bf16_f32 {v(k+n)}, {v(src[n])}, {'-' if neg else ''}{v(src[n]+1)}")
        p(f"ds_write_b64 {v(aW64)}, {v(k, 2)} offset:{row*STG_ROW}")
        p(f"ds_write_b32 {v(aW32)}, {v(k+2)} offset:{row*STG_ROW}")
        p.add((at_row or {}).get(cnt[0], []))

    def read_frags(dst):
        for s in range(12):
            p(f"ds_read_b128 {a(dst+4*s, 4)}, {v(aFr)} offset:{s*64}")

    def mfmas(T):
        for s in range(12):
            c = '0' if s == 0 else v(acc+4*T, 4)
            p(f"v_mfma_f32_16x16x32_bf16 {v(acc+4*T, 4)}, {a(fA+4*s, 4)}, {a(fB+4*s, 4)}, {c}")

    cur, nxt = Q0, Q1
    put_row(0, cur, True)
    for c in range(1, 16):
        cmul(p, nxt, cur, E16, TM)
        put_row(c, nxt, True)
        cur, nxt = nxt, cur
    read_frags(fB)
    k = pk[cnt[0] & 1]
    cnt[0] += 1
    p(f"v_mov_b32 {v(k)}, 0x3f80\nv_mov_b32 {v(k+1)}, 0x3f80")
    p(f"ds_write_b64 {v(aW64)}, {v(k, 2)}\nds_write_b32 {v(aW32)}, {v(k)}")
    p.add((at_row or {}).get(cnt[0], []))
    put_row(1, E1)
    cur = E1
    for c in range(2, 16):
        d = P[c] if c % 2 == 0 else Q0
        cmul(p, d, cur, E1, TM)
        put_row(c, d)
        cur = d
    read_frags(fA)
    G2, G3 = E1, E16
    cmul(p, G2, E256, E256, TM)
    cmul(p, G3, G2, E256, TM)
    put_row(0, E256)
    for e in range(1, 8):
        cmul(p, Q0, E256, P[2*e], TM)
        put_row(e, Q0)
        if e == 1:
            mfmas(0)
    for base, G in ((8, G2), (12, G3)):
        put_row(base, G)
        for e in range(1, 4):
            cmul(p, Q0, G, P[4*e], TM)
            put_row(base+e, Q0)
    read_frags(fA)
    cur, nxt = G3, G2
    for kk in range(4):
        cmul(p, nxt, cur, E256, TM)
        put_row(2*kk, nxt)
        cmul(p, Q0, nxt, P[8], TM)
        put_row(2*kk+1, Q0)
        cur, nxt = nxt, cur
        if kk == 0:
            mfmas(1)
    cmul(p, nxt, cur, E256, TM)
    put_row(8, nxt)
    read_frags(fA)
    p(f"ds_write_b128 {v(aT0)}, {v(acc, 4)}")
    p(f"ds_write_b128 {v(aT1)}, {v(acc+4, 4)} offset:1024")
    mfmas(2)
    p(f"ds_write_b64 {v(aT2)}, {v(acc+8, 2)} offset:2048")
    p(f"ds_write_b64 {v(aT2)}, {v(acc+10, 2)} offset:{2048+128}")

    assert all(1 <= r <= cnt[0] for r in (at_row or {}))
    g = scratch
    w = scratch + 16
    p(f"""
v_lshlrev_b32 {v(t+2)}, 2, {LANE}
v_sub_u32 {v(t+2)}, {v(aQ)}, {v(t+2)}
ds_read_b128 {v(g+8, 4)}, {v(aG3)}
ds_read_b128 {v(g+12, 4)}, {v(aG3)} offset:16
ds_read_b64 {v(g+4, 2)}, {v(t+2)} offset:{384*4 + 63*4}
ds_read_b32 {v(g+6)}, {v(t+2)} offset:{384*4 + 63*4 + 8}
ds_read_b32 {v(g+2)}, {v(aQ)} offset:{512*4}
ds_read_b32 {v(g+3)}, {v(aQ)} offset:{512*4 + 4}
ds_read_b32 {v(g)}, {v(aQ)} offset:{576*4}
ds_read_b32 {v(g+1)}, {v(aQ)} offset:{576*4 + 4}
v_and_b32 {v(t+3)}, 3, {LANE}
v_bfe_u32 {v(t+4)}, {LANE}, 2, 2
v_mul_u32_u24 {v(t+4)}, {KC_COPY}, {v(t+4)}
v_lshl_add_u32 {v(t+4)}, {v(t+3)}, 4, {v(t+4)}
v_add_u32 {v(t+4)}, s4, {v(t+4)}
ds_write_b128 {v(t+4)}, {v(R.st, 4)} offset:4096
""")
    cv = lambda d, lo, hi: p(f"v_cvt_pk_bf16_f32 {v(d)}, {v(lo)}, {v(hi)}")
    p.add(at_expand or [])
    p(f"v_and_b32 {v(t+3)}, 1, {LANE}\nv_cmp_eq_u32 vcc, 0, {v(t+3)}")
    k = g + 8
    d = w + 36
    for j, (lo, hi) in enumerate(((7, 6), (5, 4), (3, 2), (1, 0))):
        cv(d+j, k+lo, k+hi)
    p("s_mov_b32 exec_hi, 0")
    for j, (lo, hi) in enumerate(((4, 3), (2, 2), (2, 1), (0, 0))):
        cv(d+j, k+lo, k+hi)
    p("s_mov_b32 exec_hi, -1")
    p(f"ds_write_b128 {v(aK)}, {v(d, 4)} offset:3072")
    d = w + 24
    for j, (lo, hi) in enumerate(((6, 6), (5, 5), (5, 4), (4, 4))):
        cv(d+j, g+lo, g+hi)
    p(f"ds_write_b128 {v(aK)}, {v(d, 4)} offset:2048")
    for q in (1, 0):
        d = w + 12*q
        ra, rb = g + 2*q, g + 2*q + 1
        p(f"v_cndmask_b32 {v(t+3)}, {v(ra)}, {v(rb)}, vcc")
        cv(d, rb, rb)
        cv(d+2, ra, ra)
        cv(d+3, ra, ra)
        cv(d+1, rb, t+3)
        p(f"ds_write_b128 {v(aK)}, {v(d, 4)} offset:{1024*q}")
    for q in (3, 2, 1, 0):
        d = w + 12*q
        p(f"v_add_u32 {v(t+q)}, {1024*q}, {v(aK)}")
        p(f"ds_read_b64 {v(d+4, 2)}, {v(aK)} offset:{1024*q + 16}")
        for j in range(3):
            p(f"ds_read2_b32 {v(d+6+2*j, 2)}, {v(t+q)} offset0:{1+2*j} offset1:{2+2*j}")
    for q in (3, 2, 1, 0):
        d = w + 12*q
        p(f"ds_write_b128 {v(aK)}, {v(d+2, 4)} offset:{1024*q + 2*KC_COPY}")
        p(f"ds_write_b128 {v(aK)}, {v(d+6, 4)} offset:{1024*q + KC_COPY}")
        p(f"ds_write_b128 {v(aK)}, {v(d+8, 4)} offset:{1024*q + 3*KC_COPY}")
    p(f"""
v_lshlrev_b32 {v(R.dsk)}, 16, {v(R.dsk)}
v_and_b32 {v(t)}, 15, {LANE}
v_lshrrev_b32 {v(t+1)}, 4, {LANE}
v_lshlrev_b32 {v(t+1)}, 2, {v(t+1)}
v_sub_u32 {v(t)}, {v(t)}, {v(t+1)}
""")
    for j in range(4):
        p(f"v_cmp_eq_u32 s[{6+2*j}:{7+2*j}], {j}, {v(t)}")
    for j in range(4):
        p(f"v_cndmask_b32 {v(R.dfrag+j)}, 0, {v(R.dsk)}, s[{6+2*j}:{7+2*j}]")


def conv_xprep(p, R):
    assert R.base <= 60
    R.xf, R.pk, R.acc, R.buf, R.buf2 = 72, 104, (136, 120), (152, 184), (72, 104)
    p("s_mov_b32 s4, 0x05040100\ns_mov_b32 s5, 0x07060302")
    p(f"s_lshl_b32 s6, {S_WAVE}, 10\ns_add_u32 s6, s6, {XC_LDS}\nv_lshl_add_u32 {v(R.t)}, {LANE}, 4, s6")
    for c in range(4):
        for j in range(4):
            lo, hi = R.x + 4*j + c//2, R.x + 4*j + 2 + c//2
            p(f"v_perm_b32 {v(R.pk+4*c+j)}, {v(hi)}, {v(lo)}, s{4 + (c & 1)}")
        p(f"ds_write_b128 {v(R.t)}, {v(R.pk+4*c, 4)} offset:{c*XC_CH}")
    for i in range(8):
        for hpair in range(2):
            p(f"v_lshlrev_b32 {v(R.xf+4*i+2*hpair)}, 16, {v(R.x+2*i+hpair)}")
            p(f"v_and_b32 {v(R.xf+4*i+2*hpair+1)}, 0xffff0000, {v(R.x+2*i+hpair)}")


def conv_stat_loads(p, R, ldflag):
    for k in range(4):
        p(f"s_mov_b32 s14, {k*4096}\nbuffer_load_dwordx4 {v(R.st+4*k, 4)}, {v(R.aSt)}, {SRD_WS}, s14 offen {ldflag}")


def conv_normalize(p, R):
    for i in range(8):
        for hpair in range(2):
            r = R.xf + 4*i + 2*hpair
            p(f"v_pk_fma_f32 {v(r, 2)}, {v(r, 2)}, {v(R.st+2*i, 2)}, {v(R.st+2*i, 2)} op_sel:[0,0,1] op_sel_hi:[1,0,1]")
    u = lambda i, c: v(R.xf + 4*i + c)
    for c in range(4):
        d = R.pk + 4*c
        for j in range(4):
            p(f"v_cvt_pk_bf16_f32 {v(d+j)}, {u(2*j, c)}, {u(2*j+1, c)}")
        p(f"ds_write_b128 {v(R.aUw)}, {v(d, 4)} offset:{c*UC_CH + UC_COPY}")
    cv, wr, fix = [], [], []
    for c in range(4):
        d = R.x + 4*c
        cv += [Ins(f"v_cvt_pk_bf16_f32 {v(d+j)}, {'0' if j == 0 else u(2*j-1, c)}, {u(2*j, c)}") for j in range(4)]
        wr.append(Ins(f"ds_write_b128 {v(R.aUw)}, {v(d, 4)} offset:{c*UC_CH}"))
        fix.append(Ins(f"ds_write_b16_d16_hi {v(R.aFix)}, {v(R.pk+4*c+3)} offset:{c*UC_CH}"))
    return cv, wr, fix


def conv_out(R, ph, stflag):
    par, o, off = 1 - ph, R.x + 8*ph, ph*(TB_LDS - XC_LDS)
    stage = []
    for c in range(4):
        a0 = R.acc[par] + 4*c
        stage.append([Ins(f"v_cvt_pk_bf16_f32 {v(o+2*c)}, {v(a0)}, {v(a0+1)}"),
                      Ins(f"v_cvt_pk_bf16_f32 {v(o+2*c+1)}, {v(a0+2)}, {v(a0+3)}"),
                      Ins(f"ds_write_b64 {v(R.aHw)}, {v(o+2*c, 2)} offset:{off + c*64}")])
    o = R.st + 8*ph
    rd = [Ins(f"ds_read_b64_tr_b16 {v(o+4*it+2*b, 2)}, {v(R.aHr)} offset:{off + b*256 + it*32}") for it in range(2) for b in range(2)]
    st = [[Ins(f"s_mov_b32 s14, {(16*it + 4*ph)*20480}"),
           Ins(f"buffer_store_dwordx4 {v(o+4*it, 4)}, {v(R.aHg)}, {SRD_WS}, s14 offen {stflag}", f'hst{ph}')] for it in range(2)]
    return stage, rd, st


def conv_main(p, R, shifted, stflag, extra, side=()):
    ac = lambda par, c: R.acc[par] + 4*c
    buf = lambda st: (R.buf2 if st >= 18 else R.buf)[st & 1]
    fa = lambda st, e: buf(st) + 4*e
    fb = lambda st, f: buf(st) + 16 + 4*f
    xg = R.st

    def reads(st, which='AB'):
        b, par, dl = st, 1 - st // 16, st % 16
        L = []
        for k in range(4):
            if 'A' in which:
                L.append(Ins(f"ds_read_b128 {v(fa(b, k), 4)}, {v(R.aA)} offset:{(252 - 4*(dl + 16*k))*16}"))
            if 'B' in which:
                L.append(Ins(f"ds_read_b128 {v(fb(b, k), 4)}, {v(R.aB)} offset:{par*UC_COPY + (16 + 16*k - dl)*16}"))
        return L

    def mf(st):
        b, par, dl = st, 1 - st // 16, st % 16
        L = []
        for c in range(4):
            d = v(ac(par, c), 4)
            for e in range(c + 1):
                L.append(Ins(f"v_mfma_f32_16x16x32_bf16 {d}, {v(fa(b, e), 4)}, {v(fb(b, c-e), 4)}, {d}"))
            if dl == 0:
                L.append(Ins(f"v_mfma_f32_16x16x32_bf16 {d}, {v(R.dfrag, 4)}, {v(fb(b, c), 4)}, {d}"))
        return L

    def put(st, g, its):
        extra.setdefault(st, {}).setdefault(g, []).extend(its)

    bar = lambda: [Ins("s_barrier")]
    cv, wr, fix = shifted
    for k in range(16):
        put(k // 8, k % 8, [Ins(f"v_lshlrev_b32 {v(ac(0, k//4) + k % 4)}, 16, {v(xg+k)}")])
        put(2 + k // 8, k % 8, [cv[k]])
    for c in range(4):
        put(3 + c, 8, [wr[c]])
        put(9, 2*c, [fix[c]])
    put(8, 9, bar())
    put(11, 9, bar())
    stage, rd, sto = conv_out(R, 0, stflag)
    for c in range(4):
        put(16, 2*c, stage[c][:1])
        put(16, 1 + 2*c, stage[c][1:2])
        put(16, (2, 4, 6, 8)[c], stage[c][2:])
    put(16, 12, [Ins("s_waitcnt lgkmcnt(0)")] + bar())
    put(16, 13, rd[:2])
    put(17, 0, rd[2:])
    put(17, 6, sto[0])
    put(17, 9, sto[1])

    p.add(reads(0, 'A'))
    p("s_waitcnt lgkmcnt(0)\ns_barrier")
    for c in range(4):
        p(f"ds_read_b128 {v(xg+4*c, 4)}, {v(R.aXr)} offset:{c*256}")
        p.add(reads(0, 'B')[c:c+1])
    for k in range(16):
        p(f"v_and_b32 {v(ac(1, k//4) + k % 4)}, 0xffff0000, {v(xg+k)}")
    main, fixed, start = [], {}, []
    for st in range(32):
        start.append(len(main))
        for i, it in enumerate(reads(st+1) if st < 31 else []):
            fixed.setdefault(len(main) + i, []).append(it)
        for g, its in extra.get(st, {}).items():
            fixed.setdefault(len(main) + g, []).extend(its)
        main += mf(st)
    for st, it in side:
        it.due = 10**6
    placed = {}
    p.add(pack_gaps(main, fixed, [(start[st], it) for st, it in side], 2, placed=placed))
    last = {}
    for st, it in side:
        for r in it.dst:
            last[r] = placed[id(it)]
    for g, its in fixed.items():
        for it in its:
            assert it.kind != 'vm' or all(last.get(r, -1) < g for r in it.src), it.text


S_RB, S_CB, S_SG, S_DT = 's64', 's65', 's66', 's67'


def ffn_coords(p):
    p(f"""
s_bfe_u32 s4, s2, 0x10002
s_lshl_b32 s4, s4, 3
s_lshr_b32 s6, s2, 5
s_bfe_u32 s5, s2, 0x20003
s_lshl_b32 s7, s5, 1
s_add_u32 s6, s6, s7
s_and_b32 s6, s6, 7
s_add_u32 {S_RB}, s4, s6
s_and_b32 s4, s2, 3
s_lshl_b32 s4, s4, 2
s_add_u32 {S_CB}, s4, s5
s_and_b32 {S_SG}, s2, 1
s_and_b32 s4, s2, 2
s_lshl_b32 s4, s4, 1
s_add_u32 {S_DT}, s4, s5
s_mul_i32 s72, {S_RB}, {8*20480}
s_mul_i32 s73, {S_WAVE}, 5120
s_add_u32 s72, s72, s73
s_add_u32 s72, s72, {WS_H}
""")


H16_SLOT = 20480
H16_NSLOT = 7
S2_LDS = H16_NSLOT * H16_SLOT
WX_LDS = S2_LDS + 512
G16_LDS_END = WX_LDS + 4*3072


def stats2_loads(ph, r0, t, ldflag):
    return [Ins(f"s_mov_b32 s12, {ph*4*20480}"),
            Ins(f"buffer_load_dwordx4 {v(r0, 4)}, {v(t)}, {SRD_WS}, s12 offen {ldflag}"),
            Ins(f"s_mov_b32 s12, {ph*4*20480 + 4096}"),
            Ins(f"buffer_load_dwordx4 {v(r0+4, 4)}, {v(t+1)}, {SRD_WS}, s12 offen {ldflag}")]


def stats2_partial(r0, aw):
    t = r0 + 8
    P, Q = Prog(), Prog()
    P("s_mov_b32 s12, 0x3f803f80")
    for e in range(2):
        P(f"v_dot2_f32_bf16 {v(t+2*e)}, {v(r0+2*e)}, s12, 0")
        P(f"v_dot2_f32_bf16 {v(t+2*e+1)}, {v(r0+2*e)}, {v(r0+2*e)}, 0")
    for j in (1, 4, 5):
        for e in range(2):
            P(f"v_dot2_f32_bf16 {v(t+2*e)}, {v(r0+2*e+j)}, s12, {v(t+2*e)}")
            P(f"v_dot2_f32_bf16 {v(t+2*e+1)}, {v(r0+2*e+j)}, {v(r0+2*e+j)}, {v(t+2*e+1)}")
    Q(f"""
v_permlane32_swap_b32 {v(t)}, {v(t+2)}
v_permlane32_swap_b32 {v(t+1)}, {v(t+3)}
v_add_f32 {v(t)}, {v(t)}, {v(t+2)}
v_add_f32 {v(t+1)}, {v(t+1)}, {v(t+3)}
v_permlane16_swap_b32 {v(t)}, {v(t+1)}
v_add_f32 {v(t)}, {v(t)}, {v(t+1)}
v_add_f32_dpp {v(t)}, {v(t)}, {v(t)} row_ror:8 row_mask:0xf bank_mask:0xf
v_add_f32_dpp {v(t)}, {v(t)}, {v(t)} row_ror:4 row_mask:0xf bank_mask:0xf
v_add_f32_dpp {v(t)}, {v(t)}, {v(t)} row_ror:2 row_mask:0xf bank_mask:0xf
ds_write_b32 {v(aw)}, {v(t)}
""")
    return P.items, Q.items


def stats2_final(ph, r0, aw, stflag):
    p = Prog()
    p(f"""
ds_read_b128 {v(r0, 4)}, {v(aw+1)}
ds_read_b128 {v(r0+4, 4)}, {v(aw+1)} offset:16
v_add_f32 {v(r0)}, {v(r0)}, {v(r0+1)}
v_add_f32 {v(r0+2)}, {v(r0+2)}, {v(r0+3)}
v_add_f32 {v(r0+4)}, {v(r0+4)}, {v(r0+5)}
v_add_f32 {v(r0+6)}, {v(r0+6)}, {v(r0+7)}
v_add_f32 {v(r0)}, {v(r0)}, {v(r0+2)}
v_add_f32 {v(r0+4)}, {v(r0+4)}, {v(r0+6)}
""")
    ln_finalize(p, r0, r0+4, r0+1, r0+3, r0+2)
    p(f"v_xor_b32 {v(r0+3)}, 0x80000000, {v(r0+3)}")
    p(f"buffer_store_dwordx2 {v(r0+2, 2)}, {v(aw+2)}, {SRD_WS}, 0 offen offset:{ph*512} {stflag}", tag='st2')
    return p.items


def w_loads(base_sgpr, vaddr, idx, dst, ldflag, tag, first=False):
    L = []
    if idx % 4 == 0 or first:
        L.append(Ins(f"s_add_u32 s{base_sgpr+1}, s{base_sgpr}, {idx//4*4096}"))
    L.append(Ins(f"buffer_load_dwordx4 {dst}, {v(vaddr)}, {SRD_WS}, s{base_sgpr+1} offen offset:{(idx%4)*1024} {ldflag}", tag))
    return L


def w_bases(p):
    p(f"""
s_lshl_b32 s6, {S_CB}, 2
s_add_u32 s6, s6, {S_WAVE}
s_mul_i32 s68, s6, 61440
s_add_u32 s68, s68, {WS_W1P}
s_lshl_b32 s6, {S_DT}, 2
s_add_u32 s6, s6, {S_WAVE}
s_mul_i32 s70, s6, 61440
s_add_u32 s70, s70, {WS_W2P}
""")


GC1 = -2.0 * 0.7978845608028654 * LOG2E
GC2 = GC1 * 0.044715


def slots(i):
    if (i.kind == 'valu' and (i.trans or i.perml)) or i.kind == 'vm':
        return 2
    return 0 if i.kind in ('wait_vm', 'flush') else 1


QUIET = 0
STORE_AT = None
LOOK = 24
LATE = 90
RD_GAPS = (0, 1, 2, 4)


def depends(x, y):
    if x.kind != 'valu' or y.kind != 'valu':
        if x.kind != 'valu' and y.kind != 'valu':
            return True
        if x.kind in ('wait_vm', 'flush') or y.kind in ('wait_vm', 'flush'):
            return False
    return bool(set(x.dst) & (set(y.src) | set(y.dst))) or bool(set(x.src) & set(y.dst))


def pack_gaps(main, fixed, queue, cap, tail_extra=None, tail_every=4, placed=None):
    out, pend, quiet, cap0 = [], list(queue), 0, cap
    for g, m in enumerate(main):
        out.append(m)
        cap = cap0 + 1 if (pend and g - getattr(pend[0][1], 'due', pend[0][0]) > LATE) else cap0
        used = 0
        for it in fixed.get(g, []):
            out.append(it)
            used += slots(it)
        if quiet:
            quiet -= 1
            continue
        here, k = [], 0
        while k < min(len(pend), LOOK) and (used < cap or slots(pend[k][1]) == 0):
            e, it = pend[k]
            ok = e <= g and used + slots(it) <= cap
            ok = ok and not any(depends(x[1], it) for x in pend[:k])
            ok = ok and not any(x.kind == 'valu' and set(x.dst) & set(it.src) for x in here)
            if it.kind == 'vm' and it.wide and STORE_AT is not None:
                ok = ok and used == 0 and g % 4 == STORE_AT % 4 and (STORE_AT < 4 or g % 12 == STORE_AT)
            if not ok:
                k += 1
                continue
            out.append(it)
            here.append(it)
            used += slots(it)
            if placed is not None:
                placed[id(it)] = g
            del pend[k]
            if it.kind == 'vm' and it.wide:
                quiet = QUIET
                break
    extra = list(tail_extra or [])
    for n, q in enumerate(pend):
        out.append(q[1])
        if extra and n % tail_every == tail_every - 1:
            out += extra.pop(0)
    for grp in extra:
        out += grp
    return out


def diag_tail(p):
    if DIAG is None:
        return
    p("""
s_mul_i32 s99, s99, 10
s_add_u32 s99, s99, 6000
L_diag:
s_memrealtime s[96:97]
s_waitcnt lgkmcnt(0)
s_sub_u32 s96, s96, s94
s_cmp_lt_u32 s96, s99
s_cbranch_scc1 L_diag
""")


class G16Regs:
    def __init__(self):
        self.aL16, self.aHr, self.aG, self.aSt, self.aCf, self.aPoll = A_L16, [242, 243], 244, 245, 246, 247
        self.aS = [248, 249, 250]
        self.cfv, self.pv, self.pd, self.k, self.o = 2, 3, 4, 5, 8
        self.nacc = 4
        self.acc = [12, 24, 36, 48]
        self.cs, self.fr, self.st, self.t = 60, [72, 88], 104, 120


def g16_epilogue(R, tt, stflag):
    A = R.acc[tt % R.nacc]
    P = Prog()
    sd, nm = R.st + 2*tt, R.st + 2*tt + 1
    k1, k2, s2 = R.k, R.k + 1, R.k + 2
    G = [A + 4*tau + j for tau in range(3) for j in range(2)]
    U = [g + 2 for g in G]
    CG = [R.cs + 4*tau + j for tau in range(3) for j in range(2)]
    T = [R.t + i for i in range(6)]
    P(f"v_rcp_f32 {v(k1)}, {v(sd)}")
    P(f"v_mul_f32 {v(s2)}, {v(sd)}, {v(sd)}")
    for i in range(6):
        P(f"v_fma_f32 {v(G[i])}, {v(nm)}, {v(CG[i])}, {v(G[i])}")
    P(f"v_mul_f32 {v(k2)}, {v(k1)}, {v(k1)}")
    P(f"v_mul_f32 {v(k1)}, {f32(GC1)}, {v(k1)}")
    P(f"v_mul_f32 {v(k2)}, {f32(0.044715)}, {v(k2)}")
    for i in range(6):
        P(f"v_mul_f32 {v(T[i])}, {v(G[i])}, {v(G[i])}")
    P(f"v_mul_f32 {v(k2)}, {v(k2)}, {v(k1)}")
    for i in range(6):
        P(f"v_fma_f32 {v(U[i])}, {v(nm)}, {v(CG[i]+2)}, {v(U[i])}")
    for i in range(6):
        P(f"v_fma_f32 {v(T[i])}, {v(T[i])}, {v(k2)}, {v(k1)}")
    for i in range(6):
        P(f"v_mul_f32 {v(T[i])}, {v(T[i])}, {v(G[i])}")
    for i in range(6):
        P(f"v_exp_f32 {v(T[i])}, {v(T[i])}")
    for i in range(6):
        P(f"v_mul_f32 {v(G[i])}, {v(G[i])}, {v(U[i])}")
    for i in range(6):
        P(f"v_fma_f32 {v(T[i])}, {v(T[i])}, {v(s2)}, {v(s2)}")
    for i in range(6):
        P(f"v_rcp_f32 {v(T[i])}, {v(T[i])}")
    for i in range(6):
        P(f"v_mul_f32 {v(G[i])}, {v(G[i])}, {v(T[i])}")
    for tau in range(3):
        P(f"v_cvt_pk_bf16_f32 {v(T[tau])}, {v(G[2*tau])}, {v(G[2*tau+1])}")
    for tau in range(3):
        P(f"v_cvt_pk_bf16_f32 {v(R.o+tau)}, {v(G[2*tau])}, {v(G[2*tau+1])}")
    P(f"v_permlane16_swap_b32 {v(T[0])}, {v(T[1])}")
    P(f"v_permlane16_swap_b32 {v(T[2])}, {v(R.o+3)}")
    P(f"s_mov_b32 s75, {tt*49152}")
    P(f"v_permlane32_swap_b32 {v(T[1])}, {v(R.o+3)}")
    P(f"buffer_store_dwordx4 {v(R.o, 4)}, {v(R.aG)}, {SRD_WS}, s75 offen {stflag}", tag=f'g{tt}')
    return P.items


def g16_epilogue_pk(R, tts, stflag, mid=None):
    P = Prog()
    ctx = []
    for n, tt in enumerate(tts):
        A = R.acc[tt % R.nacc]
        ctx.append(dict(tt=tt, A=A, st=R.st + 2*tt, k=R.fr[n], T=R.fr[n] + 4, o=R.fr[n] + 12))
    each = lambda f: [f(c) for c in ctx]
    each(lambda c: P(f"v_rcp_f32 {v(c['k'])}, {v(c['st'])}\nv_mul_f32 {v(c['k']+2)}, {v(c['st'])}, {v(c['st'])}"))
    for tau in range(3):
        each(lambda c: P(f"v_pk_fma_f32 {v(c['A']+4*tau, 2)}, {v(c['st'], 2)}, {v(R.cs+4*tau, 2)}, {v(c['A']+4*tau, 2)} op_sel:[1,0,0] op_sel_hi:[1,1,1]"))
    each(lambda c: P(f"v_mul_f32 {v(c['k']+1)}, {v(c['k'])}, {v(c['k'])}\nv_mul_f32 {v(c['k'])}, {f32(GC1)}, {v(c['k'])}"))
    each(lambda c: P(f"v_mul_f32 {v(c['k']+1)}, {f32(0.044715)}, {v(c['k']+1)}"))
    for tau in range(3):
        each(lambda c: P(f"v_pk_mul_f32 {v(c['T']+2*tau, 2)}, {v(c['A']+4*tau, 2)}, {v(c['A']+4*tau, 2)}"))
    each(lambda c: P(f"v_mul_f32 {v(c['k']+1)}, {v(c['k']+1)}, {v(c['k'])}"))
    for tau in range(3):
        each(lambda c: P(f"v_pk_fma_f32 {v(c['T']+2*tau, 2)}, {v(c['T']+2*tau, 2)}, {v(c['k'], 2)}, {v(c['k'], 2)} op_sel:[0,1,0] op_sel_hi:[1,1,0]"))
    for tau in range(3):
        each(lambda c: P(f"v_pk_mul_f32 {v(c['T']+2*tau, 2)}, {v(c['T']+2*tau, 2)}, {v(c['A']+4*tau, 2)}"))
    for i in range(6):
        each(lambda c: P(f"v_exp_f32 {v(c['T']+i)}, {v(c['T']+i)}"))
    for tau in range(3):
        each(lambda c: P(f"v_pk_fma_f32 {v(c['A']+4*tau+2, 2)}, {v(c['st'], 2)}, {v(R.cs+4*tau+2, 2)}, {v(c['A']+4*tau+2, 2)} op_sel:[1,0,0] op_sel_hi:[1,1,1]"))
    for tau in range(3):
        each(lambda c: P(f"v_pk_fma_f32 {v(c['T']+2*tau, 2)}, {v(c['T']+2*tau, 2)}, {v(c['k']+2, 2)}, {v(c['k']+2, 2)} op_sel:[0,0,0] op_sel_hi:[1,0,0]"))
    for i in range(6):
        each(lambda c: P(f"v_rcp_f32 {v(c['T']+i)}, {v(c['T']+i)}"))
    for tau in range(3):
        each(lambda c: P(f"v_pk_mul_f32 {v(c['A']+4*tau, 2)}, {v(c['A']+4*tau, 2)}, {v(c['A']+4*tau+2, 2)}"))
    for tau in range(3):
        each(lambda c: P(f"v_pk_mul_f32 {v(c['A']+4*tau, 2)}, {v(c['A']+4*tau, 2)}, {v(c['T']+2*tau, 2)}"))
    for tau in range(3):
        each(lambda c: P(f"v_cvt_pk_bf16_f32 {v(c['T']+tau)}, {v(c['A']+4*tau)}, {v(c['A']+4*tau+1)}"))
    for tau in range(3):
        each(lambda c: P(f"v_cvt_pk_bf16_f32 {v(c['o']+tau)}, {v(c['A']+4*tau)}, {v(c['A']+4*tau+1)}"))
    each(lambda c: P(f"v_permlane16_swap_b32 {v(c['T'])}, {v(c['T']+1)}\nv_permlane16_swap_b32 {v(c['T']+2)}, {v(c['o']+3)}"))
    each(lambda c: P(f"v_permlane32_swap_b32 {v(c['T']+1)}, {v(c['o']+3)}"))
    for c in ctx:
        P(f"s_mov_b32 s75, {c['tt']*49152}")
        P(f"buffer_store_dwordx4 {v(c['o'], 4)}, {v(R.aG)}, {SRD_WS}, s75 offen {stflag}", tag=f"g{c['tt']}")
    return P.items


def g16_dma(R, tt, ldflag, vaddr=None):
    L = []
    for i in range(5):
        grp = []
        if i % 4 == 0:
            grp.append(Ins(f"s_add_u32 m0, s73, {(tt % H16_NSLOT)*H16_SLOT + i*1024}"))
            grp.append(Ins(f"s_add_u32 s74, s72, {tt*H16_SLOT + i*1024}"))
        grp.append(Ins(f"buffer_load_dwordx4 {v(vaddr or R.aL16)}, {SRD_WS}, s74 offen offset:{(i%4)*1024} {ldflag} lds", f'h{tt}'))
        L.append(grp)
    return L


def g16_main(p, R, stflag, lag=1, hooks=None, cap=2):
    hooks = hooks or {}

    def hread(gg, i):
        tt, gr = divmod(gg, 5)
        off = (tt % H16_NSLOT)*H16_SLOT + (4*gr + i)*1024
        b, o = divmod(off, 4*H16_SLOT)
        return Ins(f"ds_read2st64_b64 {v(R.fr[gg & 1]+4*i, 4)}, {v(R.aHr[b])} offset0:{o//512} offset1:{o//512+1}")

    def wv(tag):
        q = Prog()
        q.wait_vm(tag)
        return q.items[0]

    p.wait_vm('h0')
    p("s_waitcnt lgkmcnt(0)\ns_barrier")
    p.add([hread(0, i) for i in range(4)])
    main, fixed, queue = [], {}, list(hooks.get('pre', []))
    for gg in range(40):
        tt, gr = divmod(gg, 5)
        A = R.acc[tt % R.nacc]
        for tau in range(3):
            for i in range(4):
                s = 4*gr + i
                d = v(A+4*tau, 4)
                main.append(Ins(f"v_mfma_f32_16x16x32_bf16 {d}, {a(12*s+4*tau, 4)}, {v(R.fr[gg & 1]+4*i, 4)}, {'0' if s == 0 else d}"))
        if gg + 1 < 40:
            for i in range(4):
                fixed.setdefault(12*gg + RD_GAPS[i], []).append(hread(gg+1, i))
            fixed.setdefault(12*gg + 11, []).append(Ins("s_waitcnt lgkmcnt(0)"))
        if gr == 3 and tt + 1 < 8:
            fixed.setdefault(12*gg + 10, []).extend([wv(f'h{tt+1}'), Ins("s_barrier")])
    epis, placed = [], {}
    npk = hooks.get('npk', 0)
    for tt in range(8 - npk):
        epi = g16_epilogue(R, tt, stflag)
        epis.append(epi)
        if ('in_epi', tt) in hooks:
            pos, extra = hooks[('in_epi', tt)]
            epi = epi[:pos] + extra + epi[pos:]
        for it in epi:
            it.due = 60*(tt + 1) + 2
        queue += [(max(60*(tt + 1) + 2, hooks.get(('epi_from', tt), 0)), it) for it in epi]
    for g, items in hooks.get('fixed', {}).items():
        fixed.setdefault(g, []).extend(items)
    p.add(pack_gaps(main, fixed, queue, cap, hooks.get('tail'), hooks.get('tail_every', 12), placed))
    done = [max(placed.get(id(it), 480) for it in e) for e in epis]
    assert all(done[tt] < 60*(tt + R.nacc) - 2 for tt in range(8 - R.nacc)), done
    R.epi_done = done
    if npk:
        p.add(g16_epilogue_pk(R, list(range(8 - npk, 8)), stflag))


def g16_setup(p, R, t):
    p(f"""
v_lshlrev_b32 {v(R.aHr[0])}, 3, {LANE}
v_add_u32 {v(R.aHr[1])}, {4*H16_SLOT}, {v(R.aHr[0])}
s_mul_i32 s5, {S_RB}, {8*49152}
s_lshl_b32 s6, {S_CB}, 2
s_add_u32 s6, s6, {S_WAVE}
s_mul_i32 s7, s6, 768
s_add_u32 s5, s5, s7
s_add_u32 s5, s5, {WS_G}
v_add_u32 {v(t)}, s5, {v(R.aL16)}
v_mov_b32 {v(t+1)}, {OOB}
v_cmp_gt_u32 s[8:9], 48, {LANE}
v_cndmask_b32 {v(R.aG)}, {v(t+1)}, {v(t)}, s[8:9]
s_lshl_b32 s4, {S_RB}, 10
s_add_u32 s4, s4, {WS_ST2}
v_and_b32 {v(t)}, 15, {LANE}
v_lshl_add_u32 {v(R.aSt)}, {v(t)}, 4, s4
s_lshl_b32 s5, {S_RB}, 4
s_add_u32 s5, s5, {S_CB}
s_lshl_b32 s5, s5, 5
s_add_u32 s5, s5, {S_WAVE}
s_lshl_b32 s5, s5, 2
s_add_u32 s5, s5, {WS_CF}
v_mov_b32 {v(t)}, s5
v_cmp_eq_u32 s[8:9], 0, {LANE}
v_cndmask_b32 {v(R.aCf)}, {v(t+1)}, {v(t)}, s[8:9]
s_lshr_b32 s5, {S_CB}, 3
s_lshl_b32 s5, s5, 8
s_add_u32 s4, s4, s5
s_and_b32 s5, {S_CB}, 3
s_lshl_b32 s5, s5, 6
s_add_u32 s4, s4, s5
s_and_b32 s5, {S_CB}, 4
s_lshl_b32 s5, s5, 1
s_add_u32 s4, s4, s5
v_add_u32 {v(t)}, s4, {v(R.aL16)}
s_lshl_b32 s4, {S_W0}, 2
v_cmp_gt_u32 s[8:9], s4, {LANE}
v_cndmask_b32 {v(S2R+16)}, {v(t+1)}, {v(t)}, s[8:9]
s_lshr_b32 s4, {S_CB}, 2
s_mul_i32 s4, s4, 20480
s_and_b32 s5, {S_CB}, 3
s_lshl_b32 s5, s5, 5
s_add_u32 s4, s4, s5
s_add_u32 s4, s4, s72
v_lshrrev_b32 {v(t)}, 1, {LANE}
v_lshl_add_u32 {v(t)}, {v(t)}, 7, s4
v_and_or_b32 {v(S2R+12)}, {v(R.aL16)}, 16, {v(t)}
v_cmp_gt_u32 s[8:9], 16, {LANE}
v_cndmask_b32 {v(S2R+13)}, {v(t+1)}, {v(S2R+12)}, s[8:9]
v_and_b32 {v(t)}, 1, {LANE}
v_lshrrev_b32 {v(t+1)}, 4, {LANE}
v_lshl_add_u32 {v(t)}, {v(t)}, 2, {v(t+1)}
s_lshl_b32 s4, {S_WAVE}, 2
s_add_u32 s4, s4, {S2_LDS}
v_lshl_add_u32 {v(S2R+14)}, {v(t)}, 4, s4
v_and_b32 {v(t+1)}, 3, {LANE}
s_mov_b32 s4, {S2_LDS}
v_lshl_add_u32 {v(S2R+15)}, {v(t+1)}, 5, s4
s_lshl_b32 s4, {S_RB}, 2
s_add_u32 s4, s4, {S_WAVE}
s_lshl_b32 s4, s4, 9
s_add_u32 s4, s4, {WS_CF}
v_bfe_u32 {v(t)}, {LANE}, 2, 2
v_lshl_add_u32 {v(t)}, {v(t)}, 5, {v(t+1)}
v_lshl_add_u32 {v(R.aPoll)}, {v(t)}, 2, s4
s_lshl_b32 s4, {S_RB}, 3
s_add_u32 s4, s4, {S_SG}
s_mul_i32 s76, s4, 49152
s_mul_i32 s5, {S_WAVE}, 12288
s_add_u32 s76, s76, s5
s_add_u32 s76, s76, {WS_G}
s_mul_i32 s91, {S_WAVE}, 3072
s_add_u32 s4, s73, {H16_SLOT}
v_add_u32 {v(R.aS[0])}, s4, {v(R.aL16)}
v_add_u32 {v(R.aS[1])}, {3*H16_SLOT}, {v(R.aS[0])}
s_add_u32 s4, s91, {WX_LDS}
v_add_u32 {v(R.aS[2])}, s4, {v(R.aL16)}
s_mov_b32 s82, s70
s_and_b32 s4, {S_DT}, 3
s_mul_i32 s4, s4, 3072
v_min_u32 {v(t)}, 23, {LANE}
v_lshl_add_u32 {v(A_GT)}, {v(t)}, 7, s4
""")


def g16_cs(R, t, ldflag):
    setup = f"""
s_lshl_b32 s4, {S_CB}, 2
s_add_u32 s4, s4, {S_WAVE}
s_mul_i32 s4, s4, 192
s_add_u32 s4, s4, {WS_CS}
v_and_b32 {v(t)}, 3, {LANE}
v_mul_u32_u24 {v(t)}, {192*64}, {v(t)}
v_and_or_b32 {v(t)}, {LANE}, 48, {v(t)}
v_add_u32 {v(t)}, s4, {v(t)}
"""
    return setup, [Ins(f"buffer_load_dwordx4 {v(R.cs+4*tau, 4)}, {v(t)}, {SRD_WS}, 0 offen offset:{tau*64} {ldflag}") for tau in range(3)]


def g16_cs_sum(p, R):
    for d in ('quad_perm:[1,0,3,2]', 'quad_perm:[2,3,0,1]'):
        for i in range(12):
            p(f"v_add_f32_dpp {v(R.cs+i)}, {v(R.cs+i)}, {v(R.cs+i)} {d} row_mask:0xf bank_mask:0xf")


def g16_stat_loads(R, ldflag):
    return [Ins(f"buffer_load_dwordx4 {v(R.st+4*k, 4)}, {v(R.aSt)}, {SRD_WS}, 0 offen offset:{k*256} {ldflag}") for k in range(4)]


RED_G, RED_D, RED_W, RED_SLOT = 288, 1152, 5760, 23040
RED_LDS = H16_SLOT
W2_EARLY = W2_NV + 4


def w2_reg(idx):
    if idx < W2_NV:
        return v(W2V0 + 4*idx, 4)
    if idx < W2_EARLY:
        return a(240 + 4*(idx - W2_NV), 4)
    return a(48 + 4*(idx - W2_EARLY), 4)


def w2_stage(k):
    if k < 3:
        return 0, 's91', WX_LDS + k*1024
    slot, i = divmod(k - 3, 5)
    return 60*(slot + 2) + 48, 's73', (slot + 1)*H16_SLOT + i*1024


def w2_stage_dma(k, vaddr, ldflag):
    _, base, off = w2_stage(k)
    i = k if k < 3 else (k - 3) % 5
    L = []
    if i % 4 == 0:
        L.append(Ins(f"s_add_u32 m0, {base}, {off}"))
        L.append(Ins(f"s_add_u32 s71, s70, {(W2_EARLY + k)*1024}"))
    L.append(Ins(f"buffer_load_dwordx4 {v(vaddr)}, {SRD_WS}, s71 offen offset:{(i % 4)*1024} {ldflag} lds", 'w2s'))
    return L


def w2_stage_read(R, k):
    _, base, off = w2_stage(k)
    if k < 3:
        return Ins(f"ds_read_b128 {w2_reg(W2_EARLY + k)}, {v(R.aS[2])} offset:{k*1024}")
    b, o = divmod(off - H16_SLOT, 3*H16_SLOT)
    return Ins(f"ds_read_b128 {w2_reg(W2_EARLY + k)}, {v(R.aS[b])} offset:{o}")


class G2Regs:
    def __init__(self, G1):
        self.aL16 = G1.aL16
        A = Alloc(G1.acc[0], limit=W2V0)
        self.acc = [A(20, 4), A(20, 4)]
        self.pt = A(32, 4)
        self.res = A(16, 4)
        self.o = A(4, 4)
        self.t = A(4, 4)
        self.gx = A(16, 4)
        self.aRw = A()
        self.aRr = A()
        self.aHres = A()
        self.aOut = A()
        self.aS = G1.aS

    def g(self, tt, s):
        b = tt % 3
        if b == 0:
            return a(4*s, 4)
        if b == 1:
            return a(160 + 4*s, 4)
        return a(208 + 4*s, 4) if s < 8 else v(self.gx + 4*(s-8), 4)


def g2_setup(p, R):
    t = R.t
    p(f"""
s_mul_i32 s4, {S_WAVE}, {RED_W}
s_add_u32 s4, s4, {RED_LDS}
v_lshrrev_b32 {v(t)}, 4, {LANE}
v_mul_u32_u24 {v(t)}, {RED_G}, {v(t)}
v_and_b32 {v(t+1)}, 15, {LANE}
v_lshl_add_u32 {v(t)}, {v(t+1)}, 4, {v(t)}
v_add_u32 {v(R.aRw)}, s4, {v(t)}
v_lshrrev_b32 {v(t)}, 2, {LANE}
v_min_u32 {v(t)}, 9, {v(t)}
v_and_b32 {v(t+1)}, 3, {LANE}
s_lshl_b32 s4, {S_WAVE}, 2
v_add_u32 {v(t+1)}, s4, {v(t+1)}
v_mul_u32_u24 {v(t+2)}, {2*RED_G}, {v(t)}
v_lshl_add_u32 {v(t+2)}, {v(t+1)}, 4, {v(t+2)}
v_add_u32 {v(R.aRr)}, {RED_LDS}, {v(t+2)}
s_lshl_b32 s4, {S_RB}, 3
s_add_u32 s4, s4, {S_SG}
s_mul_i32 s6, s4, {H16_SLOT}
s_mul_i32 s5, {S_DT}, {20*128}
s_add_u32 s5, s5, s6
s_add_u32 s5, s5, {WS_H}
v_lshlrev_b32 {v(t+2)}, 8, {v(t)}
v_lshl_add_u32 {v(t+2)}, {v(t+1)}, 3, {v(t+2)}
v_add_u32 {v(R.aHres)}, s5, {v(t+2)}
s_mul_i32 s5, {S_DT}, 160
s_add_u32 s5, s5, s6
v_and_b32 {v(t+2)}, 1, {v(t+1)}
v_mad_u32_u24 {v(t+1)}, {v(t+2)}, 31, {v(t+1)}
v_mul_u32_u24 {v(t+2)}, 1280, {v(t+1)}
v_lshl_add_u32 {v(t+2)}, {v(t)}, 4, {v(t+2)}
v_add_u32 {v(t+2)}, s5, {v(t+2)}
v_mov_b32 {v(t+3)}, {OOB}
v_cmp_gt_u32 s[8:9], 40, {LANE}
v_cndmask_b32 {v(R.aOut)}, {v(t+3)}, {v(t+2)}, s[8:9]
""")


def g2_res_loads(R, tt, ldflag):
    return [[Ins(f"s_mov_b32 s88, {tt*40960}")] * (1 - k) + [
        Ins(f"buffer_load_dwordx2 {v(R.res+4*tt+2*k, 2)}, {v(R.aHres)}, {SRD_WS}, s88 offen offset:{k*128} {ldflag}")] for k in range(2)]


def g2_gloads(R, tt, ldflag):
    L = []
    for s in range(12):
        grp = []
        if s % 4 == 0:
            grp.append(Ins(f"s_add_u32 s77, s76, {tt*2*49152 + s*1024}"))
        grp.append(Ins(f"buffer_load_dwordx4 {R.g(tt, s)}, {v(R.aL16)}, {SRD_WS}, s77 offen offset:{(s%4)*1024} {ldflag}"))
        L.append(grp)
    return L


def g2_send(R, tt, d):
    return Ins(f"ds_write_b128 {v(R.aRw)}, {v(R.acc[tt & 1]+4*d, 4)} offset:{(tt & 1)*RED_SLOT + d*RED_D}")


def g2_final(R, tt, outflag, packed=False):
    P = Prog()
    for w in range(4):
        for k in range(2):
            P(f"ds_read_b128 {v(R.pt+8*w+4*k, 4)}, {v(R.aRr)} offset:{(tt & 1)*RED_SLOT + w*RED_W + k*RED_G}")

    def add8(d, x):
        if packed:
            for j in range(0, 8, 2):
                P(f"v_pk_add_f32 {v(d+j, 2)}, {v(d+j, 2)}, {v(x+j, 2)}")
        else:
            for j in range(8):
                P(f"v_add_f32 {v(d+j)}, {v(d+j)}, {v(x+j)}")
    add8(R.pt, R.pt+8)
    for j in range(4):
        P(f"v_lshlrev_b32 {v(R.pt+8+2*j)}, 16, {v(R.res+4*tt+j)}")
        P(f"v_and_b32 {v(R.pt+8+2*j+1)}, 0xffff0000, {v(R.res+4*tt+j)}")
    add8(R.pt+16, R.pt+24)
    add8(R.pt, R.pt+8)
    add8(R.pt, R.pt+16)
    for j in range(4):
        P(f"v_cvt_pk_bf16_f32 {v(R.o+j)}, {v(R.pt+2*j)}, {v(R.pt+2*j+1)}")
    P(f"s_mov_b32 s78, {(64*(tt & 1) + 1 - (tt >> 1))*1280}")
    P(f"buffer_store_dwordx4 {v(R.o, 4)}, {v(R.aOut)}, {SRD_OUT}, s78 offen {outflag}")
    return P.items


def g2_main(p, R, outflag, hooks):
    for tt in range(4):
        main, fixed, queue = [], {}, list(hooks.get(('queue', tt), []))
        for sg in range(4):
            for d in range(5):
                c = v(R.acc[tt & 1]+4*d, 4)
                for i in range(3):
                    main.append(Ins(f"v_mfma_f32_16x16x32_bf16 {c}, {w2_reg(15*sg+3*d+i)}, {R.g(tt, 3*sg+i)}, {'0' if sg + i == 0 else c}"))
        if tt >= 1:
            for d in range(5):
                fixed.setdefault(1 + 4*d, []).append(g2_send(R, tt-1, d))
            fixed.setdefault(22, []).extend([Ins("s_waitcnt lgkmcnt(0)"), Ins("s_barrier")])
            queue += [(23, it) for it in g2_final(R, tt-1, outflag)]
        if tt == 3:
            for d in range(2):
                fixed.setdefault(55 + 3*d, []).append(g2_send(R, 3, d))
        for g, items in hooks.get(('fixed', tt), {}).items():
            fixed.setdefault(g, []).extend(items)
        p.add(hooks.get(('before', tt), []))
        p.add(pack_gaps(main, fixed, queue, 2))
        stamp(p, 23 + tt)
    p.add([g2_send(R, 3, d) for d in range(2, 5)])
    p("s_waitcnt lgkmcnt(0)\ns_barrier")
    p.add(g2_final(R, 3, outflag, packed=True))
```

```python
import sys, os
import phases
phases.STAMPS = bool(os.environ.get('STAMPS'))
phases.DIAG = int(os.environ['DIAG']) if os.environ.get('DIAG') else None
from phases import *

NAME = 'sequential_preLN__ssm_conv_s4__geglu_ffn__prompt'
REF = open(f'cdna_kernels/{NAME}.s.ref').read()
HEAD = ''.join(l + '\n' for l in REF.split('\n') if l.startswith(';') and '@launch' not in l)
LDS = max(G16_LDS_END, CONV_LDS_END)
OPT = dict(kv.split('=') for kv in os.environ.get('OPT', '').split(',') if kv)
opt = lambda k, d: type(d)(OPT.get(k, d))
SPIN_MAX = 1 << 18
_uid = [0]


def spin(p, loads, cond, sleep=2):
    _uid[0] += 1
    L = f'L_spin{_uid[0]}'
    p(f"s_mov_b32 s90, 0\n{L}:")
    p(loads)
    p("s_waitcnt vmcnt(0)")
    p(cond)
    p(f"""
s_nop 4
s_cbranch_vccz {L}_done
s_mov_b64 exec, vcc
{f's_sleep {sleep}' if sleep else ''}
s_add_u32 s90, s90, 1
s_cmp_lt_u32 s90, {SPIN_MAX}
s_cbranch_scc1 {L}
{L}_done:
s_mov_b64 exec, -1
""")


def check_or_spin(loads, cond, sleep=2):
    _uid[0] += 1
    L = f'L_ok{_uid[0]}'
    q = Prog()
    q(cond + f"\ns_nop 4\ns_cbranch_vccz {L}")
    n = len(q.items)
    spin(q, loads, cond, sleep)
    for it in q.items[n:]:
        if it.op == 's_waitcnt':
            it.op = 's_waitcnt_untracked'
        if it.kind == 'vm':
            it.kind = 'other'
    q(f"{L}:")
    return q.items


def items(text, tag=None):
    return Prog()(text, tag).items


def init_flag_poll(t):
    return (f"v_lshlrev_b32 {v(t)}, 2, {LANE}",
            f"buffer_load_dword {v(t+1)}, {v(t)}, {SRD_DBG}, 0 offen sc1",
            f"v_cmp_eq_u32 vcc, 0, {v(t+1)}")


def pack_flag_poll(t, which):
    if which == 1:
        setup = f"""
s_mul_i32 s4, {S_CB}, 3
s_lshr_b32 s4, s4, 1
s_lshl_b32 s4, s4, 9
s_add_u32 s4, s4, {WS_FLAG + 160*128}
v_and_b32 {v(t)}, 7, {LANE}
v_lshl_add_u32 {v(t)}, {v(t)}, 7, s4
"""
    else:
        setup = f"""
s_lshr_b32 s4, {S_DT}, 2
s_lshl_b32 s5, {S_WAVE}, 3
s_add_u32 s4, s4, s5
s_lshl_b32 s4, s4, 7
s_add_u32 s4, s4, {WS_FLAG + 224*128}
v_and_b32 {v(t)}, 3, {LANE}
v_lshl_add_u32 {v(t)}, {v(t)}, 8, s4
"""
    return (setup, f"buffer_load_dword {v(t+1)}, {v(t)}, {SRD_WS}, 0 offen sc1", f"v_cmp_gt_u32 vcc, {which}, {v(t+1)}")


def blocking(p, poll, sleep=4):
    p(poll[0])
    spin(p, poll[1], poll[2], sleep)


def wg_flag_addr(d, t, conv=False):
    return f"""
s_lshl_b32 s4, s2, 7
s_add_u32 s4, s4, {WS_REP if conv else WS_FLAG}
s_mul_i32 s5, {S_W0}, {opt('rep', 1) if conv else 1}
v_mul_u32_u24 {v(d)}, {160*128}, {LANE}
v_add_u32 {v(d)}, s4, {v(d)}
v_mov_b32 {v(t)}, {OOB}
v_cmp_gt_u32 s[8:9], s5, {LANE}
v_cndmask_b32 {v(d)}, {v(t)}, {v(d)}, s[8:9]
"""


def wg_flag_store(t, d, value):
    return f"v_mov_b32 {v(d)}, {value}\nbuffer_store_dword {v(d)}, {v(t)}, {SRD_WS}, 0 offen sc1"


def publish_wg_flag(p, t, value):
    p("s_barrier")
    p(wg_flag_addr(t, t+1))
    p(wg_flag_store(t, t+1, value))


def conv_flag_poll(t, d, need):
    return (f"s_and_b32 s4, s2, {opt('rep', 1) - 1}\ns_lshl_b32 s4, s4, 2\ns_add_u32 s4, s4, {S_WAVE}\ns_mul_i32 s4, s4, {40*128}\ns_add_u32 s4, s4, {WS_REP}\nv_min_u32 {v(t)}, 39, {LANE}\nv_lshl_add_u32 {v(t)}, {v(t)}, 7, s4",
            f"buffer_load_dword {v(d)}, {v(t)}, {SRD_WS}, 0 offen sc1",
            f"v_cmp_gt_u32 vcc, {need}, {v(d)}")


def untracked(its):
    its = finalize(its)
    for it in its:
        if it.op == 's_waitcnt':
            it.op = 's_waitcnt_untracked'
        if it.kind in ('vm', 'ds'):
            it.kind = 'other'
    return its


def code_prefetch(p, t, u):
    p(f"""
s_getpc_b64 s[80:81]
L_pc{u}:
s_sub_u32 s80, s80, L_pc{u}-{NAME}_kernel
s_subb_u32 s81, s81, 0
s_bfe_u32 s4, s2, 0x30003
s_lshl_b32 s5, {S_WAVE}, 3
s_add_u32 s4, s4, s5
s_lshl_b32 s4, s4, 7
v_min_u32 {v(t)}, 11, {LANE}
v_lshl_add_u32 {v(t)}, {v(t)}, 12, s4
v_min_u32 {v(t)}, L_code_end-{NAME}_kernel-4, {v(t)}
global_load_dword v254, {v(t)}, s[80:81]
""")


def rotated(p, blocks, name, after_first):
    p(f"s_lshr_b32 s12, s15, 5\ns_mov_b32 s13, 0\nL_{name}_go:\ns_cmp_eq_u32 s12, 1\ns_cbranch_scc1 L_{name}1\ns_cmp_eq_u32 s12, 2\ns_cbranch_scc1 L_{name}2")
    for k, blk in enumerate(blocks):
        p(f"L_{name}{k}:")
        p.add(blk)
        p(f"s_mov_b32 s12, {(k + 1) % 3}")
        if k < 2:
            p(f"s_branch L_{name}_next")
    p(f"L_{name}_next:\ns_add_u32 s13, s13, 1\ns_cmp_eq_u32 s13, 3\ns_cbranch_scc1 L_{name}_done\ns_cmp_eq_u32 s13, 2\ns_cbranch_scc1 L_{name}_go")
    after_first(p)
    p(f"s_branch L_{name}_go\nL_{name}_done:")


def build():
    phases.LATE = opt('late', 115)
    p = Prog()
    cp0 = opt('cp0', 1)
    prologue(p, 256, 'L_end', early=(lambda q: code_prefetch(q, 2, 'e')) if cp0 else None)
    w1 = lambda i, first=False: w_loads(68, A_W1, i, a(4*i, 4), 'sc1', 'w1', first)
    w2 = lambda i, first=False: w_loads(70, A_L16, i, w2_reg(i), 'sc1', 'w2', first)
    if opt('fs', 0):
        stamp(p, 29)
    p("s_cmp_ge_u32 s2, 160\ns_cbranch_scc1 L_helper")

    p("s_and_b32 s4, s2, 7\ns_mul_i32 s4, s4, 20\ns_lshr_b32 s5, s2, 3\ns_add_u32 s15, s4, s5")
    R = ConvRegs()
    xl = conv_loads(p, R, 's15')
    if opt('fs', 0):
        stamp(p, 30)
    p(f"""
s_and_b32 s4, s2, 7
s_mul_i32 s4, s4, 160
s_bfe_u32 s5, s2, 0x10006
s_mul_i32 s5, s5, 156
s_add_u32 s4, s4, s5
s_bfe_u32 s5, s2, 0x30003
s_lshl_b32 s6, {S_WAVE}, 3
s_add_u32 s5, s5, s6
s_mul_i32 s5, s5, 1280
s_add_u32 s4, s4, s5
v_mul_u32_u24 v58, {32*1280}, {LANE}
v_add_u32 v58, s4, v58
""")
    xt = items(f"global_load_dword v255, v58, {P_X}")
    xtm = opt('xt', 1)
    if xtm == 0:
        p.add(xt)
    ffn_coords(p)
    w_bases(p)
    conv_addresses(p, R, 's15')
    lane_swap_addr(p, A_W1, R.t)
    stamp(p, 1)
    if opt('fs', 0):
        p("s_waitcnt vmcnt(0)" if xtm else "s_waitcnt vmcnt(1)")
        stamp(p, 31)
    xs = opt('xs', 6)
    at_row = {opt('x0', 8) + xs*i: [xl[i]] for i in range(8)}
    ip = init_flag_poll(R.fl)
    at_row.setdefault(opt('ipr', 53), []).extend(items(ip[0] + '\n' + ip[1]))
    if opt('ks', 0):
        for r_, k_ in ((1, 15), (16, 16), (32, 17), (48, 18), (57, 19)):
            at_row.setdefault(r_, []).extend(stamp_items(k_))
    q = Prog()
    conv_stat_loads(q, R, 'sc1')
    kgen(p, R, at_row, (stamp_items(22) if opt('ks', 0) else []) + check_or_spin(ip[1], ip[2], 4) + (stamp_items(23) if opt('ks', 0) else []) + q.items, xt if xtm == 1 else None)
    stamp(p, 2)
    conv_xprep(p, R)
    pp1, pp2 = pack_flag_poll(R.fl, 1), pack_flag_poll(R.t + 4, 2)
    p(pp1[0])
    G1 = G16Regs()
    cs_setup, cs_loads = g16_cs(G1, R.aX, 'sc1')
    pe = conv_flag_poll(A_CPOLL, 59, 1)
    side = Prog()
    side(pp2[0])
    side(cs_setup)
    side(wg_flag_addr(A_CFLAG, R.t, True))
    side(pe[0])
    g16_setup(side, G1, R.t)
    p(pp1[1])
    stamp(p, 3)
    cond = '\n'.join(f"v_min3_u32 {v(R.t)}, {v(R.t) if i else v(R.st)}, {v(R.st+4*i+2)}, {v(R.st+4*i+4)}" for i in range(3))
    cond += f"\nv_min_u32 {v(R.t)}, {v(R.t)}, {v(R.st+14)}\nv_cmp_eq_u32 vcc, 0, {v(R.t)}"
    p.add(check_or_spin(render(q.items), cond))
    stamp(p, 4)
    shifted = conv_normalize(p, R)
    stamp(p, 5)
    d0 = opt('d0', 0)
    extra = {d0: {9: check_or_spin(pp1[1], pp1[2], 4)}}
    npre = opt('npre', 4)
    pre_idx = sorted(([28, 29, 30, 31] + list(range(21, 5, -1)))[:npre])
    todo = [w1(i) for i in range(60)] + [[x] for x in cs_loads] + [w2(i, i == pre_idx[0]) for i in pre_idx]
    d2 = opt('d2', 19)
    rate, credit = opt('wr', 2.4), 0.0
    for st in range(d0 + 1, 32):
        if st in (16, 17):
            continue
        credit += rate
        gaps = ([9, 4, 1] if st in (3, 4, 5, 6) else [9, 8, 3])[:int(credit)]
        for g in sorted(gaps):
            if todo and (len(todo) > npre or st > d2):
                extra.setdefault(st, {}).setdefault(g, []).extend(todo.pop(0))
                credit -= 1
    extra.setdefault(d2 - 6, {}).setdefault(5, []).extend(items(pp2[1]))
    extra.setdefault(d2, {}).setdefault(5, []).extend(check_or_spin(pp2[1], pp2[2], 4))
    wq = Prog()
    wq.wait_vm('hst0')
    fe = opt('fe', 23)
    extra.setdefault(fe, {}).setdefault(5, []).extend(wq.items + items("s_barrier\n" + wg_flag_store(A_CFLAG, R.t + 3, 1)) + stamp_items(7))
    extra.setdefault(opt('pe', 27), {}).setdefault(5, []).extend(items(pe[1]))
    extra.setdefault(15, {}).setdefault(9, []).extend(stamp_items(14))
    conv_main(p, R, shifted, 'sc1', extra, [(4, it) for it in side.items])
    stamp(p, 6)
    print('left', len(todo), file=sys.stderr)
    for grp in todo:
        p.add(grp)
    stage, rd, sto = conv_out(R, 1, 'sc1')
    for grp in stage:
        p.add(grp)
    S2 = S2R

    def start_loads(pp):
        pp.add(check_or_spin(pe[1], pe[2], opt('bsleep', 1)))
        pp("s_waitcnt lgkmcnt(0)\ns_barrier")
        stamp(pp, 13)
        pp.add(stats2_loads(0, S2, S2 + 12, 'sc1'))
        for grp in g16_dma(G1, 0, 'sc1'):
            pp.add(grp)
    start_loads(p)
    p.add(rd + sto[0] + sto[1])
    p("s_branch L_ffn")
    p.flush()

    p("L_helper:\ns_sub_u32 s15, s2, 160\ns_cmp_ge_u32 s15, 64\ns_cbranch_scc1 L_h_nostat")
    p(f"""
v_mov_b32 v60, 0
v_mov_b32 v61, 0
v_mov_b32 v62, 0
v_mov_b32 v63, 0
s_lshl_b32 s4, s15, 8
v_and_b32 v56, 15, {LANE}
v_lshl_add_u32 v56, v56, 4, s4
v_bfe_u32 v57, {LANE}, 4, 1
v_lshl_add_u32 v56, v57, 14, v56
s_lshl_b32 s4, s15, 10
s_add_u32 s4, s4, {WS_FLAG - 32*128}
v_lshl_add_u32 v57, {LANE}, 7, s4
v_cmp_gt_u32 vcc, 32, {LANE}
v_cndmask_b32 v56, v57, v56, vcc
s_mul_i32 s4, s15, {20*128}
s_add_u32 s4, s4, {WS_REP - 40*128}
v_lshl_add_u32 v57, {LANE}, 7, s4
v_cmp_gt_u32 vcc, 40, {LANE}
v_cndmask_b32 v56, v57, v56, vcc
s_cmp_eq_u32 {S_WAVE}, 0
s_cselect_b32 s4, 60, 0
v_mov_b32 v57, {OOB}
v_cmp_gt_u32 vcc, s4, {LANE}
v_cndmask_b32 v56, v57, v56, vcc
""")
    p(f"buffer_store_dwordx4 v[60:63], v56, {SRD_WS}, 0 offen sc1", tag='zero')
    stats1_loads(p, 's15')
    p.wait_vm('zero')
    p(f"""
s_barrier
s_lshl_b32 s4, s15, 2
s_cmp_eq_u32 {S_WAVE}, 0
s_cselect_b32 s5, 1, 0
v_mov_b32 v56, s4
v_cmp_gt_u32 vcc, s5, {LANE}
v_cndmask_b32 v56, v57, v56, vcc
v_mov_b32 v58, 1
buffer_store_dword v58, v56, {SRD_DBG}, 0 offen sc1
""")
    if opt('hx', 0):
        p("s_waitcnt vmcnt(2)")
    pack1_loads(p, 's15')
    stats1_compute(p, 's15', 'sc1')
    stamp(p, 8)
    lane_swap_addr(p, A_W1, 2)
    pack1_compute(p, 's15', 'sc1')
    stamp(p, 9)
    blocking(p, init_flag_poll(56))
    publish_wg_flag(p, 56, 2)
    stamp(p, 10)
    p("s_branch L_h_done")
    p.flush()
    p("L_h_nostat:\ns_sub_u32 s14, s15, 64")
    pack1_loads(p, 's15')
    if opt('h2', 1):
        p.wait_vm('pk1')
    stamp(p, 21)
    pack2_loads(p, 's14')
    lane_swap_addr(p, A_W1, 2)
    pack1_compute(p, 's15', 'sc1')
    ip = init_flag_poll(56)
    p(ip[0] + '\n' + ip[1])

    def w1_flag(pp):
        pp.add(check_or_spin(ip[1], ip[2], 4))
        publish_wg_flag(pp, 56, 1)
    pack2_compute(p, 's14', 'sc1', w1_flag)
    p("s_waitcnt vmcnt(0)")
    publish_wg_flag(p, 56, 2)
    stamp(p, 11)
    p("L_h_done:")
    ffn_coords(p)
    w_bases(p)
    flat = lambda L: [x for g in L for x in g]
    p(pe[0])
    g16_setup(p, G1, 56)
    p(f"v_mov_b32 {v(A_CFLAG)}, {OOB}")
    blocking(p, pack_flag_poll(56, 1), 8)
    if opt('ks', 0):
        stamp(p, 24)
    def w2_pre(pp):
        blocking(pp, pack_flag_poll(56, 2), 8)
        for i in pre_idx:
            pp.add(w2(i, i == pre_idx[0]))
    rotated(p, [flat(w1(i) for i in range(20*k, 20*k + 20)) for k in (1, 2, 0)], 'rw', w2_pre)
    if opt('th', 1):
        p(f"""
s_lshr_b32 s4, s15, 5
s_mul_i32 s4, s4, 20480
s_add_u32 s4, s4, s70
v_min_u32 v56, 52, {LANE}
v_mul_u32_u24 v56, 384, v56
buffer_load_dword v254, v56, {SRD_WS}, s4 offen sc1
buffer_load_dword v255, v56, {SRD_WS}, s4 offen offset:128 sc1
buffer_load_dword v254, v56, {SRD_WS}, s4 offen offset:256 sc1
""")
    if opt('ks', 0):
        stamp(p, 28)
    cs_setup, cs_loads = g16_cs(G1, 56, 'sc1')
    p(cs_setup)
    p.add(cs_loads)
    p(pe[1])
    stamp(p, 12)
    start_loads(p)
    p(f"v_mov_b32 v8, {OOB}")
    p(f"buffer_store_dword v8, v8, {SRD_WS}, 0 offen\nbuffer_store_dword v8, v8, {SRD_WS}, 0 offen", tag='hst1')

    p("L_ffn:")
    R = G1
    G2 = G2Regs(R)
    for grp in g16_dma(R, 1, 'sc1'):
        p.add(grp)
    t = R.t
    pl = conv_flag_poll(A_CPOLL, R.pd, 2)
    dots, red = stats2_partial(S2, S2 + 14)
    p.add(dots + red)
    q = Prog()
    g16_cs_sum(q, R)
    hooks, fixed = {'pre': [(0, it) for it in stats2_final(0, S2, S2 + 14, 'sc1') + q.items]}, {}
    put = lambda g, its: fixed.setdefault(g, []).extend(its)
    wq = Prog()
    wq.wait_vm('hst1')
    put(opt('fl', 14), wq.items + items('s_barrier\n' + wg_flag_store(A_CFLAG, R.cfv, 2)))
    if opt('tw', 0):
        p(f"s_lshr_b32 s4, s2, 5\ns_mul_i32 s4, s4, {60*128}\nv_min_u32 {v(t+2)}, 59, {LANE}\nv_lshl_add_u32 {v(t+2)}, {v(t+2)}, 7, s4")
        put(opt('twg', 1), items(f"buffer_load_dword v254, {v(t+2)}, {SRD_WS}, s70 offen sc1"))
    g = opt('g23', 3)
    for tt in (2, 3):
        for grp in g16_dma(R, tt, 'sc1'):
            put(g, grp)
            g += 4
    stl = g16_stat_loads(R, 'sc1')

    def stat_check(k):
        r = R.st + 8*k
        cond = f"v_min3_u32 {v(R.pv)}, {v(r)}, {v(r+2)}, {v(r+4)}\nv_min_u32 {v(R.pv)}, {v(R.pv)}, {v(r+6)}\nv_cmp_eq_u32 vcc, 0, {v(R.pv)}"
        return check_or_spin(render(stl[2*k:2*k+2]), cond)
    e0, e4 = opt('e0', 110), opt('e4', 345)
    put(e0 - 27, stl[0:2])
    gst = opt('gst', 0)
    put(0, stamp_items(1) if gst else [])
    put(e0, (stamp_items(2) if gst else []) + stat_check(0) + (stamp_items(3) if gst else []))
    hooks[('epi_from', 0)] = e0 + 1
    put(e4 - 27, stl[2:4])
    put(e4, (stamp_items(4) if gst else []) + stat_check(1) + (stamp_items(5) if gst else []))
    if gst:
        for k_, g_ in enumerate((59, 179, 299, 419)):
            put(g_, stamp_items(8 + k_))
    hooks[('epi_from', 4)] = e4 + 1
    gl = opt('gl', 140)
    put(gl - 35, items(pl[1]))
    put(gl, check_or_spin(pl[1], pl[2], 1) + items("s_barrier") + stamp_items(20) + stats2_loads(1, S2, S2 + 12, 'sc1'))
    g = gl + 5
    for tt in (4, 5, 6, 7):
        for grp in g16_dma(R, tt, 'sc1'):
            put(g, grp)
            g += 4
    g_dma_end = g
    dots, red = stats2_partial(S2, S2 + 14)
    gs = opt('gs', 190)
    put(gs, dots)
    for k, it in enumerate(red):
        put(gs + 2 + 2*k, [it])
    assert gs + 22 < 214
    for k, it in enumerate(stats2_final(1, S2, S2 + 14, 'sc1')):
        put(227 + k + (4 if k >= 2 else 0), [it])
    s2_end = 227 + k + 6

    def cflag(j):
        c = Prog()
        c.wait_vm(f'g{2*j+1}')
        c(f"v_mov_b32 {v(R.cfv)}, {j+1}\nbuffer_store_dword {v(R.cfv)}, {v(R.aCf)}, {SRD_WS}, 0 offen sc1")
        return c.items
    hooks[('in_epi', 2)] = (opt('cf', 50), cflag(0))
    hooks[('in_epi', 4)] = (opt('cf', 50), cflag(1))
    hooks['npk'] = opt('npk', 2)
    poll = f"buffer_load_dword {v(R.pv)}, {v(R.aPoll)}, {SRD_WS}, 0 offen sc1"
    gate = lambda need: check_or_spin(poll, f"v_cmp_gt_u32 vcc, {need}, {v(R.pv)}", 1)
    touch_g = lambda tt: items(f"s_add_u32 s89, s76, {tt*2*49152}\nbuffer_load_dword v254, {v(A_GT)}, {SRD_WS}, s89 offen sc1")
    rest = [i for i in range(W2_EARLY) if i not in pre_idx]
    held = lambda i: 22 <= i < 28
    rest = [i for i in rest if not held(i)] + [i for i in rest if held(i)]
    wl = lambda i: w_loads(82, R.aL16, i, w2_reg(i), 'sc1', 'w2', i == 22)
    g = opt('g23', 3) + 44
    for k in range(3):
        put(g, w2_stage_dma(k, R.aL16, 'sc1'))
        g += 4
    pending = list(rest)
    while pending and g < gl - 2 and not held(pending[0]):
        put(g, wl(pending.pop(0)))
        g += opt('wsp', 4)
    g, k = g_dma_end, 3
    while k < 60 - W2_EARLY or pending:
        if k < 60 - W2_EARLY and w2_stage(k)[0] <= g:
            put(g, w2_stage_dma(k, R.aL16, 'sc1'))
            k += 1
        elif pending and (not held(pending[0]) or g > s2_end):
            put(g, wl(pending.pop(0)))
        g += opt('wsp', 4)
    print('w2 issue ends at', g, file=sys.stderr)
    assert g <= 436
    fixed.setdefault(opt('p1', 364), []).extend(items(poll))
    fixed.setdefault(opt('p1', 364) + 36, []).extend(gate(1) + touch_g(0))
    for s_, grp in enumerate(g2_gloads(G2, 0, 'sc1')):
        fixed.setdefault(432 + 4*s_, []).extend(grp)
    fixed.setdefault(opt('p2', 458), []).extend(items(poll))
    for k in range(4):
        fixed.setdefault(119 + 120*k, []).extend(stamp_items(15 + k))
    hooks['fixed'] = fixed
    g16_main(p, R, 'sc1', hooks=hooks)
    stamp(p, 19)
    print(R.epi_done, file=sys.stderr)

    h2 = {}
    q = Prog()
    g2_setup(q, G2)
    h2[('queue', 0)] = [(0, it) for it in q.items]
    q = Prog()
    q.wait_vm('w2s')
    h2[('before', 0)] = gate(2) + stamp_items(22) + q.items
    f0 = {}
    for k in range(60 - W2_EARLY):
        f0.setdefault(k, []).append(w2_stage_read(G2, k))
    sp = opt('gsp', 4)
    for s_, grp in enumerate(g2_gloads(G2, 1, 'sc1')):
        f0.setdefault(sp*s_, []).extend(grp)
    f0.setdefault(opt('c2', 4), []).extend(cflag(2))
    f0.setdefault(opt('c3', 38), []).extend(cflag(3) + ([] if opt('fs', 0) else stamp_items(30)))
    f0.setdefault(36, []).extend(items("s_waitcnt lgkmcnt(0)\ns_barrier"))
    f0.setdefault(opt('pa', 50), []).extend(items(poll))
    res = [g2_res_loads(G2, tt, 'sc1') for tt in range(4)]
    f0.setdefault(52, []).extend(res[0][0])
    f0.setdefault(57, []).extend(res[0][1])
    h2[('fixed', 0)] = f0
    g3 = opt('g3', 18)
    f1 = {g3: gate(3) if opt('fs', 0) else stamp_items(29) + gate(3) + stamp_items(31)}
    for s_, grp in enumerate(g2_gloads(G2, 2, 'sc1')):
        f1.setdefault(min(59, g3 + 1 + sp*s_), []).extend(grp)
    f1.setdefault(opt('pb', 33), []).extend(items(poll))
    f1.setdefault(3, []).extend(res[1][0])
    f1.setdefault(8, []).extend(res[1][1])
    h2[('fixed', 1)] = f1
    g4 = opt('g4', 0)
    f2 = {g4: gate(4) + stamp_items(28)}
    for s_, grp in enumerate(g2_gloads(G2, 3, 'sc1')):
        f2.setdefault(min(59, g4 + 2 + sp*s_), []).extend(grp)
    f2.setdefault(52, []).extend(res[2][0])
    f2.setdefault(57, []).extend(res[2][1])
    h2[('fixed', 2)] = f2
    h2[('fixed', 3)] = {3: res[3][0], 8: res[3][1]}
    g2_main(p, G2, opt('outflag', ''), h2)
    stamp(p, 27)
    stamp_dump(p)
    diag_tail(p)
    p("L_end:\ns_endpgm\nL_code_end:")
    s = HEAD + f"; @launch grid=(256,1,1) block=(256,1,1) lds={LDS}\n"
    s += '.amdgcn_target "amdgcn-amd-amdhsa--gfx950"\n'
    s += kernel(f'{NAME}_kernel', p)
    return s


if __name__ == '__main__':
    open(sys.argv[1], 'w').write(build())
```
